```python
import torch

def _softmax(x, axis=-1):
    return torch.softmax(x, dim=axis)
def _gelu(x):
    return torch.nn.functional.gelu(x, approximate="tanh")
def _silu(x):
    return torch.nn.functional.silu(x)
def _sigmoid(x):
    return torch.sigmoid(x)
def _layernorm(x, axis=-1, eps=1e-5):
    m = x.mean(dim=axis, keepdim=True)
    v = x.var(dim=axis, keepdim=True, unbiased=False)
    return (x - m) / torch.sqrt(v + eps)
def _scatter_add(tgt, idx, src, axis=0):
    return tgt.clone().index_add_(axis, idx, src)
def _segment_sum(src, seg, n):
    out = torch.zeros((n,) + src.shape[1:], dtype=src.dtype)
    return out.index_add_(0, seg, src)
def _pad(x, pw):
    flat = tuple(v for pair in reversed(pw) for v in pair)
    return torch.nn.functional.pad(x, flat)

kernel_name = 'parallel_sum__linear_attn_block__dense_activation_silu__prompt'

def setup_inputs():

    _w = (lambda a: (lambda t: t.to(torch.bfloat16) if t.is_floating_point() else t)(torch.as_tensor(a)))
    def _A_setup():
        B, S, D = 1, 2048, 640
        return {
            "x": _w((lambda *s: torch.randn(*s, dtype=torch.bfloat16) * 0.05)(B, S, D)),
            "wqkv": _w((lambda *s: torch.randn(*s, dtype=torch.bfloat16) * 0.1)(D, 3 * D)),
            "wo": _w((lambda *s: torch.randn(*s, dtype=torch.bfloat16) * 0.05)(D, D)),
        }
    _A_in = _A_setup()

    def _B_setup():
        B, S, D, F = 1, 2048, 640, 1536
        return {
            "x": _w((lambda *s: torch.randn(*s, dtype=torch.bfloat16) * 0.05)(B, S, D)),
            "w1": _w((lambda *s: torch.randn(*s, dtype=torch.bfloat16) * 0.8)(D, F) * (D ** -0.5)),
            "w2": _w((lambda *s: torch.randn(*s, dtype=torch.bfloat16) * 0.1)(F, D) * (F ** -0.5)),
        }
    _B_in = _B_setup()

    return {
        "A_x": _A_in["x"],
        "A_wqkv": _A_in["wqkv"],
        "A_wo": _A_in["wo"],
        "B_x": _B_in["x"],
        "B_w1": _B_in["w1"],
        "B_w2": _B_in["w2"],
    }

def reference(A_x, A_wqkv, A_wo, B_x, B_w1, B_w2):
    def _A_ref(x, wqkv, wo):
        B, S, D = x.shape
        H = 32; Dh = D // H
        qkv = (lambda x, *d: x.permute(*d))((x @ wqkv).reshape(B, S, 3, H, Dh), 2, 0, 3, 1, 4)
        q, k, v = qkv[0], qkv[1], qkv[2]
        phi = lambda t: torch.where(t > 0, t + 1, torch.exp(t)) + 1e-6
        pq, pk = phi(q), phi(k)
        kv = torch.einsum("bhsd,bhse->bhde", pk, v)
        z = torch.einsum("bhsd->bhd", pk)
        num = torch.einsum("bhqd,bhde->bhqe", pq, kv)
        den = torch.einsum("bhqd,bhd->bhq", pq, z)[..., None] + 1e-6
        o = num / den
        return (lambda x, *d: x.permute(*d))(o, 0, 2, 1, 3).reshape(B, S, D) @ wo

    def _B_ref(x, w1, w2):
        h = torch.einsum("bsd,df->bsf", x, w1)
        h = _silu(h)
        out = torch.einsum("bsf,fd->bsd", h, w2)
        return out

    x = A_x
    xn = _layernorm(x, axis=-1)
    return x + _A_ref(xn, A_wqkv, A_wo) + _B_ref(xn, B_w1, B_w2)
```

```python
import re

TRANS = ("v_exp_f32", "v_log_f32", "v_rcp_f32", "v_rsq_f32", "v_sqrt_f32", "v_sin_f32", "v_cos_f32")
RX_RANGE = re.compile(r"^-?\|?(?:abs\()?([vas])\[(\d+):(\d+)\]\)?\|?$")
RX_ONE = re.compile(r"^-?\|?(?:abs\()?([vas])(\d+)\)?\|?$")


def regs_of(tok):
    tok = tok.strip()
    m = RX_RANGE.match(tok)
    if m:
        return [f"{m.group(1)}{i}" for i in range(int(m.group(2)), int(m.group(3)) + 1)]
    m = RX_ONE.match(tok)
    if m:
        return [f"{m.group(1)}{m.group(2)}"]
    if tok == "vcc":
        return ["vcc"]
    if tok in ("vcc_lo", "vcc_hi"):
        return ["vcc"]
    if tok in ("exec", "exec_lo", "exec_hi"):
        return ["exec"]
    if tok == "m0":
        return ["m0"]
    return []


def mfma_passes(mn):
    if "4x4x4" in mn:
        return 2
    if "16x16x32" in mn or "16x16x16" in mn:
        return 4
    if "32x32x16" in mn or "32x32x8" in mn:
        return 8
    raise ValueError(mn)


class Ins:
    __slots__ = ("text", "mn", "kind", "wr", "rd", "a", "b", "c", "states", "label", "target", "mods", "passes",
                 "vm", "lgkm", "smem", "wait_vm", "wait_lgkm", "wide_store", "data")

    def __init__(self, text):
        self.text = text
        self.label = None
        self.target = None
        self.wr, self.rd = [], []
        self.a, self.b, self.c = [], [], []
        self.states = 1
        self.kind = "other"
        self.passes = 0
        self.vm = self.lgkm = self.smem = False
        self.wait_vm = self.wait_lgkm = None
        self.wide_store = False
        self.data = []
        t = text.split(";")[0].strip()
        self.mn = ""
        self.mods = ""
        if not t:
            self.kind = "none"
            self.states = 0
            return
        if t.endswith(":"):
            self.kind = "label"
            self.label = t[:-1]
            self.states = 0
            return
        if t.startswith("."):
            self.kind = "none"
            self.states = 0
            return
        parts = t.split(None, 1)
        mn = self.mn = parts[0]
        rest = parts[1] if len(parts) > 1 else ""
        ops = [o.strip() for o in rest.split(",")] if rest else []
        if ops:
            last = ops[-1].split()
            if last:
                ops[-1] = last[0]
                self.mods = " ".join(last[1:])
        R = [regs_of(o) for o in ops]
        flat = lambda xs: [r for x in xs for r in x]
        if mn.startswith("v_mfma"):
            self.kind = "mfma"
            self.passes = mfma_passes(mn)
            self.wr, self.a, self.b, self.c = R[0], R[1], R[2], R[3]
            self.rd = self.a + self.b + self.c
        elif mn.startswith("v_"):
            self.kind = "valu"
            base = mn.replace("_e32", "").replace("_e64", "").replace("_dpp", "").replace("_sdwa", "")
            if base.startswith("v_permlane") and "swap" in base:
                self.wr = R[0] + R[1]
                self.rd = R[0] + R[1]
            elif base in ("v_add_co_u32", "v_sub_co_u32", "v_addc_co_u32", "v_subb_co_u32", "v_mad_u64_u32"):
                self.wr = R[0] + R[1]
                self.rd = flat(R[2:])
            else:
                self.wr = R[0]
                self.rd = flat(R[1:])
                if base in ("v_fmac_f32", "v_dot2c_f32_bf16", "v_writelane_b32") or "dpp" in mn or "row_" in self.mods or "quad_perm" in self.mods:
                    self.rd = self.rd + R[0]
            if base == "v_nop":
                self.wr, self.rd = [], []
        elif mn.startswith("ds_"):
            self.kind = "ds"
            self.lgkm = True
            if mn.startswith("ds_read") or "permute" in mn or "swizzle" in mn:
                self.wr = R[0]
                self.rd = flat(R[1:])
            else:
                self.rd = flat(R)
        elif mn.startswith("buffer_") or mn.startswith("global_"):
            self.kind = "vmem"
            if mn in ("buffer_inv", "buffer_wbl2"):
                self.vm = True
                return
            self.vm = True
            islds = " lds" in (" " + self.mods) or "load_lds" in mn
            if "load" in mn and not islds:
                self.wr = R[0]
                self.rd = flat(R[1:])
            elif "load" in mn:
                self.rd = flat(R) + ["m0"]
            else:
                self.rd = flat(R)
                self.data = R[0] if mn.startswith("buffer_") else R[1]
                if "atomic" in mn and "sc0" in self.mods:
                    self.wr = list(self.data)
                if mn.endswith("x3") or mn.endswith("x4"):
                    self.wide_store = True
        elif mn.startswith("s_"):
            self.kind = "salu"
            if mn == "s_nop":
                self.states = int(ops[0], 0) + 1
                self.kind = "nop"
            elif mn == "s_waitcnt":
                self.kind = "wait"
                m = re.search(r"vmcnt\((\d+)\)", rest)
                self.wait_vm = int(m.group(1)) if m else None
                m = re.search(r"lgkmcnt\((\d+)\)", rest)
                self.wait_lgkm = int(m.group(1)) if m else None
            elif mn.startswith("s_cbranch") or mn == "s_branch":
                self.kind = "branch"
                self.target = ops[0]
            elif mn in ("s_barrier", "s_endpgm", "s_setprio", "s_sleep"):
                self.kind = "misc"
            elif mn.startswith("s_load") or mn in ("s_memtime", "s_memrealtime") or mn.startswith("s_atomic"):
                self.kind = "smem"
                self.lgkm = True
                self.smem = True
                self.wr = R[0]
                self.rd = flat(R[1:])
            elif mn.startswith("s_cmp") or mn.startswith("s_bitcmp"):
                self.rd = flat(R)
            elif "saveexec" in mn:
                self.wr = R[0] + ["exec"]
                self.rd = flat(R[1:]) + ["exec"]
            else:
                self.wr = R[0]
                self.rd = flat(R[1:])
        else:
            raise ValueError("unknown instruction: " + text)


def is_trans(i):
    return i.kind == "valu" and any(i.mn.startswith(t) for t in TRANS)


def need_states(p, c):
    n = 0
    pw = set(p.wr)
    if p.kind == "valu":
        vw = {r for r in pw if r[0] in "va" and r != "vcc"}
        sw = pw - vw
        if c.kind == "mfma" and vw & set(c.rd):
            n = max(n, 2)
        if c.kind == "valu":
            if is_trans(p) and vw & set(c.rd):
                n = max(n, 1)
            if ("sdwa" in p.mn or "op_sel" in p.mods) and vw & (set(c.rd) | set(c.wr)):
                n = max(n, 1)
            if c.mn.startswith(("v_readlane", "v_readfirstlane")) and vw & set(c.rd):
                n = max(n, 1)
            if c.mn.startswith("v_permlane") and vw & set(c.rd):
                n = max(n, 2)
            if ("dpp" in c.mn or "row_" in c.mods or "quad_perm" in c.mods) and vw & set(c.rd):
                n = max(n, 2)
            if sw & set(c.rd):
                n = max(n, 4 if c.mn.startswith(("v_readlane", "v_writelane")) else 2)
            if "exec" in sw:
                n = max(n, 5)
        if c.kind == "vmem" and sw & set(c.rd):
            n = max(n, 5)
        if c.kind == "mfma" and "exec" in sw:
            n = max(n, 4)
    if p.kind == "mfma":
        k = {2: 0, 4: 1, 8: 2, 16: 3}[p.passes]
        if c.kind == "mfma":
            if pw & set(c.c):
                if p.wr == c.c and p.passes == c.passes:
                    n = max(n, (2, 0, 0, 0)[k])
                else:
                    n = max(n, (4, 6, 10, 18)[k])
            if pw & (set(c.a) | set(c.b)):
                n = max(n, (5, 8, 12, 20)[k])
            if pw & set(c.wr) and not (pw & set(c.c)):
                n = max(n, (4, 6, 10, 18)[k])
        elif c.kind in ("valu", "vmem", "ds"):
            if pw & (set(c.rd) | set(c.wr)):
                n = max(n, (5, 8, 12, 20)[k])
        if c.kind in ("valu",) and set(p.c) & set(c.wr):
            n = max(n, (1, 3, 7, 15)[k])
    if p.kind == "vmem" and p.wide_store and set(p.data) & set(c.wr):
        n = max(n, 2)
    if p.kind == "salu" and "m0" in pw and c.kind == "vmem" and "m0" in c.rd:
        n = max(n, 1)
    return n


WINDOW = 22


def _deficit(hist, seq):
    worst = 0
    ahead = 0
    for c in seq:
        if ahead >= WINDOW:
            break
        if c.states and c.kind not in ("nop",):
            dist = ahead
            for p in reversed(hist):
                if dist >= WINDOW:
                    break
                if p.states:
                    nd = need_states(p, c)
                    if nd > dist:
                        worst = max(worst, nd - dist)
                dist += p.states
        ahead += c.states
        if c.kind == "branch" and c.mn == "s_branch":
            break
        if c.mn == "s_endpgm":
            break
    return worst


def _nops(n):
    out = []
    while n > 0:
        k = min(n, 16)
        out.append(Ins(f"s_nop {k-1}"))
        n -= k
    return out


def pad_hazards(lines, log=None):
    ins = [Ins(l) for l in lines]
    out = []
    for c in ins:
        if c.states and c.kind != "nop":
            d = _deficit(out[-64:], [c])
            if d:
                if log is not None:
                    log.append((d, c.text))
                out.extend(_nops(d))
        out.append(c)
    changed = True
    while changed:
        changed = False
        labels = {x.label: i for i, x in enumerate(out) if x.label}
        for i, x in enumerate(out):
            if x.kind == "branch" and x.target in labels:
                j = labels[x.target]
                d = _deficit(out[max(0, i - 64):i + 1], out[j:j + 64])
                if d:
                    if log is not None:
                        log.append((d, "branch " + x.text))
                    out[i:i] = _nops(d)
                    changed = True
                    break
    return [x.text for x in out]


def check_waits(lines, name=""):
    ins = [Ins(l) for l in lines]
    labels = {x.label: i for i, x in enumerate(ins) if x.label}
    vm, lg = [], []
    taken = set()
    errs = []
    i = 0
    steps = 0
    while i < len(ins) and steps < 400000:
        steps += 1
        x = ins[i]
        if x.kind == "wait":
            if x.wait_vm is not None and len(vm) > x.wait_vm:
                vm = vm[len(vm) - x.wait_vm:] if x.wait_vm else []
            if x.wait_lgkm is not None:
                if x.wait_lgkm == 0:
                    lg = []
                elif not any(s for _, s in lg) and len(lg) > x.wait_lgkm:
                    lg = lg[len(lg) - x.wait_lgkm:]
        elif x.states:
            touch = set(x.rd) | set(x.wr)
            for w in vm:
                if touch & w:
                    errs.append(f"{name}: vm RAW/WAW at line {i}: {x.text}")
                    break
            for w, _ in lg:
                if touch & w:
                    errs.append(f"{name}: lgkm RAW/WAW at line {i}: {x.text}")
                    break
            if x.vm:
                vm.append(set(x.wr))
                if len(vm) > 63:
                    errs.append(f"{name}: more than 63 vm ops outstanding at line {i}: {x.text}")
            if x.lgkm:
                lg.append((set(x.wr), x.smem))
                if len(lg) > 15 and not any(s for _, s in lg):
                    errs.append(f"{name}: note >15 lgkm outstanding at line {i}: {x.text}")
        if x.kind == "branch" and x.target in labels:
            j = labels[x.target]
            if x.mn == "s_branch":
                if j > i or i not in taken:
                    taken.add(i)
                    i = j
                    continue
            elif j <= i and i not in taken:
                taken.add(i)
                i = j
                continue
        if x.mn == "s_endpgm":
            vm, lg = [], []
        i += 1
    return errs


class Em:
    def __init__(self):
        self.l = []

    def __call__(self, s):
        for t in s.split("\n"):
            t = t.strip()
            if t:
                self.l.append(t)

    def ext(self, xs):
        for x in xs:
            self(x)


def vr(base, n=1, k="v"):
    return f"{k}{base}" if n == 1 else f"{k}[{base}:{base+n-1}]"


def ar(base, n=1):
    return vr(base, n, "a")


def sr(base, n=1):
    return vr(base, n, "s")


def interleave(main, fill, per_gap, start=0):
    out = []
    f = list(fill)
    for i, m in enumerate(main):
        out.append(m)
        if i >= start:
            n = per_gap[i] if isinstance(per_gap, (list, tuple)) else per_gap
            for _ in range(n):
                if f:
                    out.append(f.pop(0))
    out.extend(f)
    return out
```

```python
S, D, F, H, DH = 2048, 640, 1536, 32, 20
HP_OFF = 0
HP_SZ = 128 * 48 * 1024
QP_OFF = HP_OFF + HP_SZ
QP_SZ = 64 * 40 * 1024
WP_OFF = QP_OFF + QP_SZ
WP_SZ = 8 * 68 * 5 * 1024
KV_OFF = WP_OFF + WP_SZ
KV_SZ = 32 * 1680
ST_OFF = KV_OFF + 65536
WS_USED = ST_OFF + (1 << 20)
```

```python
import sys
from asmlib import *
from layout import *

NAME = "parallel_sum__linear_attn_block__dense_activation_silu__prompt"
LOG2E = 0x3FB8AA3B
OOB = 0x40000000


def f2u(x):
    import struct
    return struct.unpack("<I", struct.pack("<f", x))[0]


class Cfg:
    stamps = False
    rot1 = 0
    out_flags = ""
    st_flags = "sc1"


STG = 45056
XSZ = 16384
BLK = 7168
CS_L = 3 * STG
RP_L = CS_L + 1024
K1_LDS = RP_L + 3 * 8192
PK_L, V_L = 0, 25600

ACC = 16
XF = (128, 132)
WF = (136, 164)
CSA = 192
SA, GA, ONES = 220, 224, 228
VX, VW = 230, 234
AX, AA, AB = 241, 245, 246

sW, sRB, sHG, sTY, sK, sST, sX, sA, sB, sDL, sRD = 52, 53, 54, 55, 56, 57, 58, 59, 60, 61, 62
sT0, sT1, sT2, sT3 = 63, 64, 65, 66
sNX, sNA, sNB = 67, 68, 69
sHS = 70
sSTG = 71
SRD_X, SRD_A, SRD_B, SRD_WS, SRD_KV, SRD_DBG, SRD_RP = 24, 28, 32, 36, 40, 44, 48


def srd(e, d, base, size):
    e(f"s_mov_b32 s{d}, s{base}\ns_mov_b32 s{d+1}, s{base+1}\ns_mov_b32 s{d+2}, {size}\ns_mov_b32 s{d+3}, 0x20000")


def stamp(e, cfg, idx):
    if cfg.stamps:
        e(f"s_memrealtime s[{72+2*idx}:{73+2*idx}]")


def stamp_flush(e, cfg, kernel, n, swave):
    if not cfg.stamps:
        return
    e("s_waitcnt vmcnt(0) lgkmcnt(0)")
    e(f"s_memrealtime s[{72+2*n}:{73+2*n}]\ns_waitcnt lgkmcnt(0)")
    e(f"s_lshl_b32 s3, s2, 2\ns_add_u32 s3, s3, s{swave}\ns_lshl_b32 s3, s3, 6\ns_add_u32 s3, s3, {ST_OFF + kernel*65536}")
    e("v_mov_b32 v1, 0")
    for i in range(n + 1):
        e(f"v_writelane_b32 v1, s{72+2*i}, {i}")
    e("v_mbcnt_lo_u32_b32 v2, -1, 0\nv_mbcnt_hi_u32_b32 v2, -1, v2\nv_lshlrev_b32 v3, 2, v2")
    e("v_cmp_gt_u32 vcc, 16, v2\ns_and_saveexec_b64 s[96:97], vcc")
    e(f"buffer_store_dword v1, v3, s[{SRD_WS}:{SRD_WS+3}], s3 offen\ns_waitcnt vmcnt(0)")


def k1_dma_items(ty):
    nA = 5 if ty == 0 else 3
    it = []
    it.append(f"s_add_u32 m0, s{sDL}, s{sT3}")
    for i in range(4):
        it.append(f"buffer_load_dwordx4 v{VX+i}, s[{SRD_X}:{SRD_X+3}], s{sX} offen offset:{1024*i} lds")
    groups = [(0, 4), (4, 5), (5, 7)] if ty == 0 else [(0, 3), (3, 7)]
    for a, b in groups:
        it.append(f"s_add_u32 m0, s{sDL}, s{sT2}" if a == 0 else f"s_add_u32 m0, m0, {1024*(a-prev)}")
        prev = a
        for i in range(a, b):
            s, so = (SRD_A, sA) if i < nA else (SRD_B, sB)
            it.append(f"buffer_load_dwordx4 v{VW+i}, s[{s}:{s+3}], s{so} offen offset:{1024*(i-a)} lds")
    return it


def k1_advance():
    return [f"s_add_u32 s{sK}, s{sK}, 1", f"s_cmp_eq_u32 s{sK}, 10", f"s_cselect_b32 s{sK}, 0, s{sK}",
            f"s_lshl_b32 s{sX}, s{sK}, 7", f"s_mul_i32 s{sA}, s{sK}, {64*3840}", f"s_mul_i32 s{sB}, s{sK}, {64*3072}",
            f"s_add_u32 s{sDL}, s{sDL}, {STG}", f"s_cmp_eq_u32 s{sDL}, {3*STG}", f"s_cselect_b32 s{sDL}, 0, s{sDL}"]


def k1_reads(ty, t, P):
    nAt = 5 if ty == 0 else 3
    pA = 320 if ty == 0 else 192
    pB = 128 if ty == 0 else 256
    offB = 16 * pA
    r = [f"ds_read_b128 {vr(XF[P],4)}, v{AX+t}"]
    for tau in range(7):
        w = WF[P] + 4 * tau
        if tau < nAt:
            o = t * BLK + tau * 64
            r.append(f"ds_read_b64_tr_b16 {vr(w,2)}, v{AA} offset:{o}")
            r.append(f"ds_read_b64_tr_b16 {vr(w+2,2)}, v{AA} offset:{o+4*pA}")
        else:
            o = t * BLK + offB
            r.append(f"ds_read_b64_tr_b16 {vr(w,2)}, v{AB+tau-nAt} offset:{o}")
            r.append(f"ds_read_b64_tr_b16 {vr(w+2,2)}, v{AB+tau-nAt} offset:{o+4*pB}")
    return r


def k1_setup(e, ty):
    nA = 5 if ty == 0 else 3
    cpr = 20 if ty == 0 else 12
    magic = 3277 if ty == 0 else 5462
    pA = cpr * 16
    for i in range(nA):
        e(f"v_add_u32 v2, {64*i}, v1\nv_mul_u32_u24 v3, {magic}, v2\nv_lshrrev_b32 v3, 16, v3")
        e(f"v_mul_u32_u24 v4, {cpr}, v3\nv_sub_u32 v4, v2, v4")
        e("v_cmp_lt_u32 vcc, 9, v4")
        if ty == 0:
            e(f"v_mov_b32 v5, {1280}\nv_mov_b32 v6, {2560-160}\nv_cndmask_b32 v5, v5, v6, vcc")
        else:
            e("v_mov_b32 v5, 0\nv_mov_b32 v6, -32\nv_cndmask_b32 v5, v5, v6, vcc")
        e(f"v_lshl_add_u32 v5, v4, 4, v5\nv_add_u32 v3, s{sT0}, v3\nv_mul_u32_u24 v3, 3840, v3\nv_add_u32 v5, v5, v3")
        imm = 1024 * (i if i < 4 else i - 4)
        e(f"v_add_u32 v5, s{sT1}, v5")
        e(f"v_subrev_u32 v{VW+i}, {imm}, v5" if imm else f"v_mov_b32 v{VW+i}, v5")
    lg = 3 if ty == 0 else 4
    for i in range(7 - nA):
        e(f"v_add_u32 v2, {64*i}, v1\nv_lshrrev_b32 v3, {lg}, v2\nv_and_b32 v4, {(1<<lg)-1}, v2")
        if ty == 0:
            e("v_bfe_u32 v5, v3, 1, 1")
        else:
            e("v_and_b32 v5, 3, v3")
        e(f"v_lshlrev_b32 v5, 2, v5\nv_xor_b32 v4, v4, v5\nv_add_u32 v3, s{sT0}, v3\nv_mul_u32_u24 v3, 3072, v3")
        e(f"v_lshl_add_u32 v5, v4, 4, v3\nv_add_u32 v5, s{sHS}, v5")
        imm = 1024 * i
        e(f"v_subrev_u32 v{VW+nA+i}, {imm}, v5" if imm else f"v_mov_b32 v{VW+nA+i}, v5")


def k1_read_addrs(e, ty):
    pA = 320 if ty == 0 else 192
    pB = 128 if ty == 0 else 256
    e("v_lshrrev_b32 v2, 5, v1\nv_lshlrev_b32 v2, 3, v2\nv_bfe_u32 v4, v1, 2, 2\nv_add_u32 v2, v2, v4")
    e("v_bfe_u32 v3, v1, 4, 1\nv_lshlrev_b32 v3, 5, v3\nv_and_b32 v5, 3, v1\nv_lshl_add_u32 v3, v5, 3, v3")
    e(f"v_mul_u32_u24 v5, {pA}, v2\nv_add_u32 v5, v5, v3\nv_add_u32 v{AA}, {XSZ}, v5")
    e(f"v_mul_u32_u24 v5, {pB}, v2\nv_add_u32 v5, v5, v3\nv_add_u32 v5, {XSZ}, v5")
    e("v_lshrrev_b32 v6, 1, v4" if ty == 0 else "v_mov_b32 v6, v4")
    for k in range(2 if ty == 0 else 4):
        e(f"v_xor_b32 v7, {k}, v6\nv_lshl_add_u32 v{AB+k}, v7, 6, v5")
    e(f"v_and_b32 v2, 31, v1\nv_bfe_u32 v3, v1, 1, 3\nv_lshrrev_b32 v4, 5, v1\nv_lshlrev_b32 v2, 7, v2\nv_add_u32 v2, s{sT3}, v2")
    for t in range(4):
        e(f"v_add_u32 v5, {2*t}, v4\nv_xor_b32 v5, v5, v3\nv_lshl_add_u32 v{AX+t}, v5, 4, v2")


def k1_loop(e, ty):
    nB = 2 if ty == 0 else 4
    tag = f"k1t{ty}"
    dma = k1_dma_items(ty)
    loads = [i for i, x in enumerate(dma) if x.startswith("buffer")]
    cuts = [0, loads[2] + 1, loads[5] + 1, loads[8] + 1, len(dma)]
    dgrp = [dma[cuts[i]:cuts[i + 1]] for i in range(4)]
    e(f"L_{tag}_loop:")
    for t in range(4):
        P = t & 1
        X = XF[P]
        big = [f"v_mfma_f32_32x32x16_bf16 {vr(ACC+16*k,16)}, {vr(WF[P]+4*k,4)}, {vr(X,4)}, {vr(ACC+16*k,16)}" for k in range(7)]
        s1 = f"v_mfma_f32_4x4x4_16b_bf16 {vr(SA,4)}, {vr(ONES,2)}, {vr(X,2)}, {vr(SA,4)}"
        g1 = f"v_mfma_f32_4x4x4_16b_bf16 {vr(GA,4)}, {vr(X,2)}, {vr(X,2)}, {vr(GA,4)}"
        s2 = f"v_mfma_f32_4x4x4_16b_bf16 {vr(SA,4)}, {vr(ONES,2)}, {vr(X+2,2)}, {vr(SA,4)}"
        g2 = f"v_mfma_f32_4x4x4_16b_bf16 {vr(GA,4)}, {vr(X+2,2)}, {vr(X+2,2)}, {vr(GA,4)}"
        rd = k1_reads(ty, (t + 1) & 3, P ^ 1)
        d = dgrp[(t + 1) & 3]
        tail = list(d)
        if t == 2:
            tail += k1_advance()
            tail += [f"s_add_u32 s{sST}, s{sST}, 1", f"s_cmp_ge_u32 s{sST}, 8",
                     f"s_cselect_b32 s{SRD_X+2}, 0, s{sNX}", f"s_cselect_b32 s{SRD_A+2}, 0, s{sNA}", f"s_cselect_b32 s{SRD_B+2}, 0, s{sNB}"]
            tail += [f"s_add_u32 s{sRD}, s{sRD}, 1", f"s_cmp_eq_u32 s{sRD}, 3", f"s_cselect_b32 s{sRD}, 0, s{sRD}",
                     f"s_cselect_b32 s{sT0}, {-2*STG & 0xffffffff}, s{sSTG}"]
            tail += [f"v_add_u32 v{r}, s{sT0}, v{r}" for r in [AX, AX + 1, AX + 2, AX + 3, AA] + [AB + k for k in range(nB)]]
        e("s_waitcnt lgkmcnt(0)")
        e(big[0])
        if t == 3:
            e("s_waitcnt vmcnt(11)\ns_barrier")
        e.ext(rd[0:3]); e(big[1]); e.ext(rd[3:6]); e(s1); e(g1); e(big[2]); e.ext(rd[6:9]); e(big[3]); e.ext(rd[9:12])
        e(s2); e(g2); e(big[4]); e.ext(rd[12:15]); e(big[5])
        h = (len(tail) + 1) // 2
        e.ext(tail[:h]); e(big[6]); e.ext(tail[h:])
        e(f"s_cmp_lg_u32 s{sW}, {t}\ns_cbranch_scc1 L_{tag}_nocs{t}")
        for hh in range(2):
            for k in range(7):
                e(f"v_mfma_f32_4x4x4_16b_bf16 {vr(CSA+4*k,4)}, {vr(ONES,2)}, {vr(WF[P]+4*k+2*hh,2)}, {vr(CSA+4*k,4)}")
        e(f"L_{tag}_nocs{t}:")
    e(f"s_cmp_lt_u32 s{sST}, 10\ns_cbranch_scc1 L_{tag}_loop")


NM, RS, K1P, K1N, IRS, DEL = 128, 130, 132, 134, 136, 138
CSV = 140
TU, TE = 172, 180
PKD = 188
VH, VQ, VCS = 230, 231, 232


def ep_cs_reads(tau, buf):
    return [f"ds_read_b128 {vr(CSV+16*buf+4*a,4)}, v{VCS} offset:{128*tau+32*a}" for a in range(4)]


def ep_two_quads(kind, acc, cs, out):
    o = []
    for p in range(4):
        o.append(f"v_pk_fma_f32 {vr(TU+2*p,2)}, {vr(cs+2*p,2)}, {vr(NM,2)}, {vr(acc+2*p,2)}")
    if kind == "v":
        for p in range(4):
            o.append(f"v_pk_mul_f32 {vr(TU+2*p,2)}, {vr(TU+2*p,2)}, {vr(RS,2)}")
    elif kind == "phi":
        for p in range(4):
            o.append(f"v_pk_mul_f32 {vr(TE+2*p,2)}, {vr(TU+2*p,2)}, {vr(K1P,2)}")
        for i in range(8):
            o.append(f"v_exp_f32_e64 v{TE+i}, v{TE+i} clamp")
            o.append(f"v_max_f32 v{TU+i}, v{DEL}, v{TU+i}")
        for p in range(4):
            o.append(f"v_pk_fma_f32 {vr(TU+2*p,2)}, {vr(TU+2*p,2)}, {vr(RS,2)}, {vr(TE+2*p,2)}")
    else:
        for p in range(4):
            o.append(f"v_pk_mul_f32 {vr(TE+2*p,2)}, {vr(TU+2*p,2)}, {vr(K1N,2)}")
        for i in range(8):
            o.append(f"v_exp_f32 v{TE+i}, v{TE+i}")
        for p in range(4):
            o.append(f"v_pk_fma_f32 {vr(TE+2*p,2)}, {vr(TE+2*p,2)}, {vr(IRS,2)}, {vr(IRS,2)}")
        for i in range(8):
            o.append(f"v_rcp_f32 v{TE+i}, v{TE+i}")
        for p in range(4):
            o.append(f"v_pk_mul_f32 {vr(TU+2*p,2)}, {vr(TU+2*p,2)}, {vr(TE+2*p,2)}")
    for p in range(4):
        o.append(f"v_cvt_pk_bf16_f32 v{out+p}, v{TU+2*p}, v{TU+2*p+1}")
    return o


def k1_epilogue(e, ty, cfg):
    tag = f"k1t{ty}"
    st = cfg.st_flags
    e(f"s_waitcnt lgkmcnt(0)\nv_and_b32 v2, 31, v1\nv_lshlrev_b32 v2, 2, v2\nv_add_u32 v2, {CS_L}, v2")
    for k in range(7):
        e(f"ds_add_f32 v2, v{CSA+4*k} offset:{128*k}")
    e(f"v_and_b32 v3, 3, v1\nv_cmp_eq_u32 vcc, 1, v3\nv_cndmask_b32 v4, v{GA}, v{GA+1}, vcc")
    e(f"v_cmp_eq_u32 vcc, 2, v3\nv_cndmask_b32 v4, v4, v{GA+2}, vcc\nv_cmp_eq_u32 vcc, 3, v3\nv_cndmask_b32 v4, v4, v{GA+3}, vcc")
    e(f"v_mov_b32 v5, v4\nv_mov_b32 v6, v{SA}\nv_mov_b32 v7, v{SA}")
    e("v_permlane32_swap_b32 v4, v5\nv_permlane32_swap_b32 v6, v7\nv_add_f32 v4, v4, v5\nv_add_f32 v6, v6, v7")
    c = f2u(1.0 / 640)
    e(f"v_mul_f32 v6, {c}, v6\nv_mul_f32 v4, {c}, v4\nv_fma_f32 v4, -v6, v6, v4\nv_max_f32 v4, 0, v4\nv_add_f32 v4, {f2u(1e-5)}, v4")
    e(f"v_rsq_f32 v{RS}, v4\nv_sub_f32 v{NM}, 0, v6\nv_sub_f32 v{NM+1}, 0, v6")
    e(f"v_mov_b32 v{RS+1}, v{RS}\nv_mul_f32 v{IRS}, v4, v{RS}\nv_mul_f32 v{IRS+1}, v4, v{RS}")
    e(f"v_mul_f32 v{K1P}, {LOG2E}, v{RS}\nv_mul_f32 v{K1P+1}, {LOG2E}, v{RS}")
    e(f"v_sub_f32 v{K1N}, 0, v{K1P}\nv_sub_f32 v{K1N+1}, 0, v{K1P}\nv_mul_f32 v{DEL}, {f2u(1e-6)}, v{IRS}")
    e(f"v_lshrrev_b32 v2, 5, v1\nv_lshlrev_b32 v{VCS}, 4, v2\nv_add_u32 v{VCS}, {CS_L}, v{VCS}")
    e(f"v_bfe_u32 v3, v1, 4, 1\nv_mul_u32_u24 v3, 49152, v3\nv_and_b32 v4, 15, v1\nv_lshl_add_u32 v3, v4, 4, v3\nv_lshl_add_u32 v{VH}, v2, 9, v3")
    e(f"v_lshlrev_b32 v{VQ}, 4, v1")
    ksb = 0 if ty == 0 else 8
    e(f"s_lshl_b32 s{sT0}, s{sRB}, 2\ns_add_u32 s{sT0}, s{sT0}, s{sW}\ns_mul_i32 s{sT1}, s{sT0}, {2*49152}")
    e(f"s_lshr_b32 s{sT2}, s{sHG}, 2\ns_mul_i32 s{sT2}, s{sT2}, {24*1024}\ns_add_u32 s{sT1}, s{sT1}, s{sT2}")
    e(f"s_and_b32 s{sT2}, s{sHG}, 3\ns_lshl_b32 s{sT2}, s{sT2}, {11 if ty == 0 else 12}\ns_add_u32 s{sT1}, s{sT1}, s{sT2}")
    e(f"s_add_u32 s{sHS}, s{sT1}, {HP_OFF + ksb*1024}")
    e("s_waitcnt vmcnt(0) lgkmcnt(0)\ns_barrier")

    def h_tile(tau, k, buf):
        for p in range(2):
            e.ext(ep_two_quads("silu", ACC + 16 * tau + 8 * p, CSV + 16 * buf + 8 * p, PKD + 4 * p))
            e(f"buffer_store_dwordx4 {vr(PKD+4*p,4)}, v{VH}, s[{SRD_WS}:{SRD_WS+3}], s{sHS} offen offset:{1024*k+256*p} {st}")

    if ty == 1:
        e(f"s_lshl_b32 s{sT1}, s{sRB}, 3\ns_add_u32 s{sT1}, s{sT1}, s{sHG}\ns_mul_i32 s{sT1}, s{sT1}, 3\ns_add_u32 s{sK}, s{sT1}, s{sW}")
        e(f"s_cmp_eq_u32 s{sW}, 3\ns_cselect_b32 s{sK}, 340, s{sK}")
        e(f"s_cmp_ge_u32 s{sK}, 340\ns_cbranch_scc1 L_{tag}_norp1")
        e(f"s_mul_i32 s{sX}, s{sK}, 52429\ns_lshr_b32 s{sX}, s{sX}, 18\ns_mul_i32 s{sT1}, s{sX}, 5\ns_sub_u32 s{sA}, s{sK}, s{sT1}")
        e(f"s_cmp_ge_u32 s{sX}, 48\ns_cselect_b32 s{SRD_RP}, s8, s14\ns_cselect_b32 s{SRD_RP+1}, s9, s15")
        e(f"s_cselect_b32 s{SRD_RP+2}, {640*1280}, s{sNB}\ns_cselect_b32 s{sT1}, 48, 0\ns_mov_b32 s{SRD_RP+3}, 0x20000")
        e(f"s_sub_u32 s{sT1}, s{sX}, s{sT1}\ns_mul_i32 s{sT1}, s{sT1}, {32*1280}\ns_lshl_b32 s{sT2}, s{sA}, 8\ns_add_u32 s{sB}, s{sT1}, s{sT2}")
        e(f"s_lshl_b32 s{sDL}, s{sW}, 13\ns_add_u32 s{sDL}, s{sDL}, {RP_L}")
        e("v_lshrrev_b32 v2, 4, v1\nv_and_b32 v3, 15, v1\nv_lshlrev_b32 v4, 1, v2\nv_xor_b32 v3, v3, v4\nv_mul_u32_u24 v2, 1280, v2")
        e("v_lshl_add_u32 v8, v3, 4, v2\nv_xor_b32 v3, 8, v3\nv_lshl_add_u32 v9, v3, 4, v2")
        for i in range(8):
            e(f"s_add_u32 m0, s{sDL}, {1024*i}\ns_add_u32 s{sT1}, s{sB}, {5120*i}")
            e(f"buffer_load_dwordx4 v{8 if i < 4 else 9}, s[{SRD_RP}:{SRD_RP+3}], s{sT1} offen lds")
        e(f"L_{tag}_norp1:")
        e(f"s_mul_i32 s{sT1}, s{sT0}, {40*1024}\ns_mul_i32 s{sT2}, s{sHG}, {5*1024}\ns_add_u32 s{sT1}, s{sT1}, s{sT2}\ns_add_u32 s{sRD}, s{sT1}, {QP_OFF}")
        order = [3, 4, 5, 6, 0, 1, 2]
        e.ext(ep_cs_reads(order[0], 0))
        for n, tau in enumerate(order):
            buf = n & 1
            if n + 1 < 7:
                e.ext(ep_cs_reads(order[n + 1], buf ^ 1))
                e("s_waitcnt lgkmcnt(4)")
            else:
                e("s_waitcnt lgkmcnt(0)")
            if tau >= 3:
                h_tile(tau, tau - 3, buf)
            else:
                for p in range(2 if tau < 2 else 1):
                    t = 2 * tau + p
                    e.ext(ep_two_quads("phi", ACC + 16 * tau + 8 * p, CSV + 16 * buf + 8 * p, PKD + 4 * p))
                    if t == 4:
                        e(f"s_add_u32 s{sRD}, s{sRD}, 4096")
                    e(f"buffer_store_dwordx4 {vr(PKD+4*p,4)}, v{VQ}, s[{SRD_WS}:{SRD_WS+3}], s{sRD} offen offset:{1024*(t&3)} {st}")
        e(f"s_cmp_ge_u32 s{sK}, 340\ns_cbranch_scc1 L_{tag}_norp2")
        e("v_bfe_u32 v2, v1, 4, 1\nv_lshrrev_b32 v3, 5, v1\nv_bfe_u32 v4, v1, 2, 2")
        e("v_lshlrev_b32 v5, 4, v2\nv_lshl_add_u32 v5, v3, 2, v5\nv_add_u32 v5, v5, v4")
        e("v_lshl_add_u32 v6, v2, 2, v4\nv_lshlrev_b32 v6, 5, v6\nv_lshl_add_u32 v6, v5, 8, v6")
        e(f"v_and_b32 v7, 3, v1\nv_lshl_add_u32 v6, v7, 3, v6\nv_add_u32 v6, s{sDL}, v6")
        e("s_waitcnt vmcnt(13)")
        for c in range(8):
            e(f"v_xor_b32 v7, {32*c}, v6")
            e(f"ds_read_b64_tr_b16 {vr(16+4*c,2)}, v7\nds_read_b64_tr_b16 {vr(18+4*c,2)}, v7 offset:2048")
        for c in range(8):
            e(f"s_lshl_b32 s{sT0}, s{sA}, 3\ns_add_u32 s{sT0}, s{sT0}, {c}\ns_mul_i32 s{sT1}, s{sT0}, 52429\ns_lshr_b32 s{sT1}, s{sT1}, 18")
            e(f"s_mul_i32 s{sT2}, s{sT1}, 335\ns_add_u32 s{sT2}, s{sT2}, s{sT0}\ns_mul_i32 s{sT1}, s{sX}, 5\ns_add_u32 s{sT2}, s{sT2}, s{sT1}")
            e(f"s_lshl_b32 s{sT2}, s{sT2}, 10\ns_add_u32 s{sT2}, s{sT2}, {WP_OFF}")
            e(f"s_waitcnt lgkmcnt({14-2*c})")
            e(f"buffer_store_dwordx4 {vr(16+4*c,4)}, v{VQ}, s[{SRD_WS}:{SRD_WS+3}], s{sT2} offen {st}")
        e(f"L_{tag}_norp2:")
    else:
        e(f"v_and_b32 v3, 31, v1\ns_lshl_b32 s{sT1}, s{sW}, 5\nv_add_u32 v3, s{sT1}, v3\nv_mul_u32_u24 v3, 200, v3")
        e("v_lshrrev_b32 v2, 5, v1\nv_lshl_add_u32 v8, v2, 3, v3\nv_lshl_add_u32 v9, v2, 4, v3")
        e("v_mul_u32_u24 v4, 96, v2\nv_add_u32 v4, v4, v3\nv_mov_b32 v10, 0x3f80\nv_mov_b32 v11, 0")
        e(f"ds_write_b64 v4, v[10:11] offset:{V_L+40}\nds_write_b64 v4, v[10:11] offset:{V_L+88}")
        e(f"s_lshl_b32 s{sT1}, s{sHG}, 2\nv_mov_b32 v12, s{sT1}")
        e(f"buffer_load_dword v13, v12, s[{SRD_DBG}:{SRD_DBG+3}], 0 offen sc1")
        e.ext(ep_cs_reads(0, 0))
        for tau in range(5):
            buf = tau & 1
            e.ext(ep_cs_reads(tau + 1, buf ^ 1))
            e("s_waitcnt lgkmcnt(4)")
            for p in range(2):
                a0 = 4 * tau + 2 * p
                kind = "phi" if a0 < 10 else "v"
                e.ext(ep_two_quads(kind, ACC + 16 * tau + 8 * p, CSV + 16 * buf + 8 * p, PKD + 4 * p))
                for q in range(2):
                    a = a0 + q
                    base = PK_L if a < 10 else V_L
                    Q = 2 * (a % 10)
                    off = base + (Q // 5) * 48 + (Q % 5) * 8
                    e(f"ds_write_b64 v{9 if Q % 5 == 4 else 8}, {vr(PKD+4*p+2*q,2)} offset:{off}")
        e.ext(ep_cs_reads(6, 0))
        e("s_waitcnt lgkmcnt(0)\ns_barrier")
        e("v_bfe_u32 v2, v1, 2, 2\nv_lshlrev_b32 v2, 3, v2\nv_lshrrev_b32 v3, 5, v1\nv_lshl_add_u32 v2, v3, 1, v2\nv_mul_u32_u24 v2, 200, v2")
        e(f"v_bfe_u32 v4, v1, 4, 1\nv_lshl_add_u32 v2, v4, 5, v2\nv_and_b32 v4, 3, v1\nv_lshl_add_u32 v2, v4, 3, v2\ns_mul_i32 s{sT1}, s{sW}, 48\nv_add_u32 v2, s{sT1}, v2")
        KB = 16
        for half in range(2):
            for m in range(4 * half, 4 * half + 4):
                o = (m >> 1) * 6400 + (m & 1) * 800
                r = KB + 8 * m
                e(f"ds_read_b64_tr_b16 {vr(r,2)}, v2 offset:{V_L+o}\nds_read_b64_tr_b16 {vr(r+2,2)}, v2 offset:{V_L+o+200}")
                e(f"ds_read_b64_tr_b16 {vr(r+4,2)}, v2 offset:{PK_L+o}\nds_read_b64_tr_b16 {vr(r+6,2)}, v2 offset:{PK_L+o+200}")
                if m >= 2:
                    e("s_waitcnt lgkmcnt(8)")
                    mm = m - 2
                    e(f"v_mfma_f32_32x32x16_bf16 v[80:95], {vr(KB+8*mm,4)}, {vr(KB+8*mm+4,4)}, {'0' if mm == 0 else 'v[80:95]'}")
        e(f"s_waitcnt lgkmcnt(4)\nv_mfma_f32_32x32x16_bf16 v[80:95], {vr(KB+48,4)}, {vr(KB+52,4)}, v[80:95]")
        e(f"s_waitcnt lgkmcnt(0)\nv_mfma_f32_32x32x16_bf16 v[80:95], {vr(KB+56,4)}, {vr(KB+60,4)}, v[80:95]")
        e(f"v_and_b32 v4, 31, v1\nv_mul_u32_u24 v5, 320, v3\nv_lshl_add_u32 v5, v4, 2, v5")
        e(f"s_lshl_b32 s{sT1}, s{sHG}, 2\ns_add_u32 s{sT1}, s{sT1}, s{sW}\ns_mul_i32 s{sT1}, s{sT1}, 1680")
        e(f"v_mov_b32 v6, {OOB}\nv_cmp_gt_u32 vcc, 20, v4\nv_cndmask_b32 v14, v6, v5, vcc\nv_cmp_gt_u32 vcc, 20, v1\nv_cndmask_b32 v15, v6, v5, vcc")
        e(f"L_{tag}_poll:\ns_waitcnt vmcnt(0)\nv_readfirstlane_b32 s{sT2}, v13\ns_cmp_lg_u32 s{sT2}, 0\ns_cbranch_scc1 L_{tag}_go")
        e(f"s_add_u32 s{sST}, s{sST}, 1\ns_cmp_gt_u32 s{sST}, 0x100000\ns_cbranch_scc1 L_{tag}_go")
        e(f"s_sleep 2\nbuffer_load_dword v13, v12, s[{SRD_DBG}:{SRD_DBG+3}], 0 offen sc1\ns_branch L_{tag}_poll")
        e(f"L_{tag}_go:")
        for i in range(12):
            e(f"buffer_atomic_add_f32 v{80+i}, v{14 if i < 9 else 15}, s[{SRD_KV}:{SRD_KV+3}], s{sT1} offen offset:{(8*(i>>2)+(i&3))*80}")
        h_tile(5, 0, 1)
        h_tile(6, 1, 0)


def kernel1(cfg):
    e = Em()
    e("k1_kernel:")
    stamp(e, cfg, 0)
    e("s_cmp_ge_u32 s2, 256\ns_cbranch_scc1 L_k1_end")
    e("s_load_dwordx16 s[4:19], s[0:1], 0\ns_load_dwordx2 s[20:21], s[0:1], 64")
    e(f"v_and_b32 v1, 63, v0\nv_lshrrev_b32 v2, 6, v0\nv_readfirstlane_b32 s{sW}, v2")
    e(f"s_and_b32 s{sT0}, s2, 7\ns_lshr_b32 s{sT1}, s2, 3")
    e(f"s_lshr_b32 s{sT2}, s{sT0}, 1\ns_lshl_b32 s{sT2}, s{sT2}, 2\ns_and_b32 s{sRB}, s{sT1}, 3\ns_add_u32 s{sRB}, s{sRB}, s{sT2}")
    e(f"s_and_b32 s{sT0}, s{sT0}, 1\ns_lshr_b32 s{sT2}, s{sT1}, 3\ns_lshl_b32 s{sHG}, s{sT0}, 2\ns_add_u32 s{sHG}, s{sHG}, s{sT2}")
    e(f"s_bfe_u32 s{sTY}, s{sT1}, 0x10002")
    e(f"s_mul_i32 s{sHS}, s{sT0}, 1536\ns_lshl_b32 s{sT3}, s{sT2}, 7\ns_lshl_b32 s{sT3}, s{sT3}, s{sTY}\ns_add_u32 s{sHS}, s{sHS}, s{sT3}")
    e(f"s_lshl_b32 s{sT3}, s{sTY}, 9\ns_add_u32 s{sHS}, s{sHS}, s{sT3}")
    if cfg.rot1 == 0:
        e(f"s_mov_b32 s{sK}, 0")
    elif cfg.rot1 == 1:
        e(f"s_lshr_b32 s{sK}, s{sT1}, 2\ns_xor_b32 s{sK}, s{sK}, s{sT1}\ns_and_b32 s{sK}, s{sK}, 1\ns_mul_i32 s{sK}, s{sK}, 5")
    elif cfg.rot1 == 2:
        e(f"s_lshr_b32 s{sK}, s{sT1}, 2\ns_and_b32 s{sT3}, s{sT1}, 3\ns_lshl_b32 s{sT3}, s{sT3}, 1\ns_add_u32 s{sK}, s{sK}, s{sT3}\ns_and_b32 s{sK}, s{sK}, 7")
    e(f"s_lshl_b32 s{sX}, s{sK}, 7\ns_mul_i32 s{sA}, s{sK}, {64*3840}\ns_mul_i32 s{sB}, s{sK}, {64*3072}")
    e(f"s_mov_b32 s{sDL}, 0\ns_mov_b32 s{sRD}, 0\ns_mov_b32 s{sST}, 0\ns_mov_b32 s{sSTG}, {STG}")
    e(f"s_mov_b32 s{sNX}, {S*D*2}\ns_mov_b32 s{sNA}, {D*1920*2}\ns_mov_b32 s{sNB}, {D*F*2}")
    e(f"s_lshl_b32 s{sT0}, s{sRB}, 7\ns_lshl_b32 s{sT1}, s{sW}, 5\ns_add_u32 s{sT0}, s{sT0}, s{sT1}")
    e(f"v_lshrrev_b32 v2, 3, v1\nv_add_u32 v2, s{sT0}, v2\nv_mul_u32_u24 v2, 1280, v2\nv_lshrrev_b32 v3, 4, v1\nv_and_b32 v4, 7, v1\nv_xor_b32 v3, v3, v4")
    e(f"v_lshl_add_u32 v{VX}, v3, 4, v2\nv_xor_b32 v3, 4, v3\nv_lshl_add_u32 v4, v3, 4, v2")
    e(f"v_add_u32 v{VX+1}, 9216, v4\nv_add_u32 v{VX+2}, {2*9216}, v{VX}\nv_add_u32 v{VX+3}, {3*9216}, v4")
    e(f"s_lshl_b32 s{sT0}, s{sW}, 4\ns_mul_i32 s{sT1}, s{sHG}, 160")
    e(f"s_mul_i32 s{sT2}, s{sW}, {BLK}\ns_add_u32 s{sT2}, s{sT2}, {XSZ}\ns_lshl_b32 s{sT3}, s{sW}, 12")
    e(f"s_cmp_eq_u32 s{sTY}, 1\ns_cbranch_scc1 L_k1_ty1")
    for ty in range(2):
        tag = f"k1t{ty}"
        if ty == 1:
            e("L_k1_ty1:")
        k1_setup(e, ty)
        e("s_waitcnt lgkmcnt(0)")
        srd(e, SRD_X, 4, S * D * 2); srd(e, SRD_A, 6, D * 1920 * 2); srd(e, SRD_B, 12, D * F * 2)
        srd(e, SRD_WS, 20, WS_USED); srd(e, SRD_DBG, 18, 256)
        e(f"s_add_u32 s{SRD_KV}, s20, {KV_OFF}\ns_addc_u32 s{SRD_KV+1}, s21, 0\ns_mov_b32 s{SRD_KV+2}, {KV_SZ}\ns_mov_b32 s{SRD_KV+3}, 0x20000")
        stamp(e, cfg, 1)
        e("v_mov_b32 v8, 0\nv_mov_b32 v9, 0\nv_mov_b32 v10, 0\nv_mov_b32 v11, 0")
        if ty == 0:
            e(f"s_cmp_lg_u32 s{sRB}, 0\ns_cbranch_scc1 L_{tag}_noz")
            e(f"s_mul_i32 s3, s{sHG}, 6720\nv_lshlrev_b32 v2, 4, v0\nv_add_u32 v3, 4096, v2\nv_mov_b32 v4, {OOB}\nv_cmp_gt_u32 vcc, 164, v0\nv_cndmask_b32 v3, v4, v3, vcc")
            e(f"buffer_store_dwordx4 v[8:11], v2, s[{SRD_KV}:{SRD_KV+3}], s3 offen sc1\nbuffer_store_dwordx4 v[8:11], v3, s[{SRD_KV}:{SRD_KV+3}], s3 offen sc1")
            e(f"L_{tag}_noz:")
        for sg in range(2):
            e.ext(k1_dma_items(ty))
            e.ext(k1_advance())
        e.ext(k1_dma_items(ty)[:4])
        k1_read_addrs(e, ty)
        e(f"v_lshlrev_b32 v2, 2, v0\nds_write_b32 v2, v8 offset:{CS_L & 0xffff}" if CS_L < 65536 else
          f"v_lshlrev_b32 v2, 2, v0\nv_add_u32 v2, {CS_L}, v2\nds_write_b32 v2, v8")
        e(f"v_mov_b32 v{ONES}, 0x3f803f80\nv_mov_b32 v{ONES+1}, 0x3f803f80")
        for r in list(range(ACC, ACC + 112)) + list(range(CSA, CSA + 36)):
            e(f"v_mov_b32 v{r}, 0")
        e("s_waitcnt vmcnt(14) lgkmcnt(0)\ns_barrier")
        stamp(e, cfg, 2)
        if ty == 0:
            e(f"s_or_b32 s3, s{sRB}, s{sW}\ns_cmp_lg_u32 s3, 0\ns_cbranch_scc1 L_{tag}_nof")
            e(f"s_lshl_b32 s3, s{sHG}, 2\nv_mov_b32 v2, s3\nv_mov_b32 v3, 1\nbuffer_store_dword v3, v2, s[{SRD_DBG}:{SRD_DBG+3}], 0 offen sc1")
            e(f"L_{tag}_nof:")
        e.ext(k1_reads(ty, 0, 0))
        k1_loop(e, ty)
        stamp(e, cfg, 3)
        k1_epilogue(e, ty, cfg)
        stamp(e, cfg, 4)
        stamp_flush(e, cfg, 0, 5, sW)
        e("s_endpgm")
    e("L_k1_end:\ns_endpgm")
    return e.l


K2_KV = 256
K2_RED = K2_KV + 4 * 14336
K2_LDS = K2_RED + 4 * 20480
ACC2, OO, NN, KF, KW, TM = 16, 96, 176, 208, 220, 238
PQA, RING = 0, 80
DEPTH = 4


def kernel2(cfg):
    e = Em()
    sW2, sRB2, sCB, sH, sWp, sQ, sT0, sT1, sT2, sHM = 52, 53, 54, 56, 60, 61, 63, 64, 65, 66
    e("k2_kernel:")
    stamp(e, cfg, 0)
    e("s_cmp_ge_u32 s2, 256\ns_cbranch_scc1 L_k2_end")
    e("s_load_dwordx2 s[4:5], s[0:1], 0\ns_load_dwordx2 s[16:17], s[0:1], 48\ns_load_dwordx2 s[20:21], s[0:1], 64")
    e(f"v_and_b32 v1, 63, v0\nv_lshrrev_b32 v2, 6, v0\nv_readfirstlane_b32 s{sW2}, v2\nv_lshlrev_b32 v2, 4, v1")
    e(f"s_and_b32 s{sT0}, s2, 7\ns_lshr_b32 s{sT1}, s2, 3")
    e(f"s_lshr_b32 s{sT2}, s{sT0}, 1\ns_lshl_b32 s{sT2}, s{sT2}, 3\ns_and_b32 s{sRB2}, s{sT1}, 7\ns_add_u32 s{sRB2}, s{sRB2}, s{sT2}")
    e(f"s_and_b32 s{sT0}, s{sT0}, 1\ns_lshl_b32 s{sT0}, s{sT0}, 2\ns_lshr_b32 s{sCB}, s{sT1}, 3\ns_add_u32 s{sCB}, s{sCB}, s{sT0}")
    e(f"s_mul_i32 s{sT0}, s{sRB2}, {4*49152}\ns_mul_i32 s{sT1}, s{sW2}, {12*1024}\ns_add_u32 s{sH}, s{sT0}, s{sT1}")
    for r in range(1, 4):
        e(f"s_add_u32 s{sH+r}, s{sH}, {r*49152}")
    e(f"s_mul_i32 s{sT0}, s{sCB}, {340*1024}\ns_add_u32 s{sT0}, s{sT0}, {WP_OFF}\ns_mul_i32 s{sT1}, s{sW2}, {60*1024}\ns_add_u32 s{sWp}, s{sT0}, s{sT1}")
    e(f"s_mul_i32 s{sT1}, s{sW2}, {25*1024}\ns_add_u32 s62, s{sT0}, s{sT1}\ns_add_u32 s62, s62, {240*1024}")
    e(f"s_mul_i32 s{sT0}, s{sRB2}, {80*1024}\ns_mul_i32 s{sT1}, s{sW2}, {10*1024}\ns_add_u32 s{sQ}, s{sT0}, s{sT1}\ns_add_u32 s{sQ}, s{sQ}, {QP_OFF}")
    e(f"s_mov_b32 s{sHM}, 0\ns_mov_b32 s{sHM+1}, -1")
    e("s_waitcnt lgkmcnt(0)")
    srd(e, SRD_X, 4, S * D * 2); srd(e, SRD_A, 16, S * D * 2); srd(e, SRD_WS, 20, WS_USED)
    stamp(e, cfg, 1)
    WS = f"s[{SRD_WS}:{SRD_WS+3}]"
    vmq = []

    def vm(text, tag):
        e(text)
        vmq.append(tag)

    def wait_vm(tag):
        idx = max(i for i, t in enumerate(vmq) if t == tag)
        e(f"s_waitcnt vmcnt({min(63, len(vmq)-1-idx)})")

    seq = [("U", m) for m in range(8)] + [("V", u) for u in range(5)] + [("U", m) for m in range(8, 12)]

    def issue(n):
        kind, m = seq[n]
        rb = RING + 36 * (n % DEPTH)
        if kind == "U":
            for r in range(4):
                vm(f"buffer_load_dwordx4 {ar(rb+4*r,4)}, v2, {WS}, s{sH+r} offen offset:{1024*(m&3)}", n)
            if (m & 3) == 3:
                for r in range(4):
                    e(f"s_add_u32 s{sH+r}, s{sH+r}, 4096")
        sw = sWp if kind == "U" else 62
        for c in range(5):
            if c == 4:
                e(f"s_add_u32 s{sw}, s{sw}, 4096")
            vm(f"buffer_load_dwordx4 {ar(rb+16+4*c,4)}, v2, {WS}, s{sw} offen offset:{1024*(c&3)}", n)
        e(f"s_add_u32 s{sw}, s{sw}, 1024")

    issue(0)
    e(f"s_mul_i32 s{sT0}, s{sW2}, 13440\ns_add_u32 s{sT0}, s{sT0}, {KV_OFF}\ns_mul_i32 s{sT1}, s{sW2}, 14336\ns_add_u32 s{sT1}, s{sT1}, {K2_KV}")
    for i in range(14):
        if i % 4 == 0:
            e(f"s_add_u32 m0, s{sT1}, {1024*i}\ns_add_u32 s{sT2}, s{sT0}, {1024*i}")
        vm(f"buffer_load_dwordx4 v2, {WS}, s{sT2} offen offset:{1024*(i&3)} lds", "kv")
    for r in range(2):
        for t in range(10):
            if t % 4 == 0:
                e(f"s_add_u32 s{sT2}, s{sQ}, {r*40960+1024*t}")
            vm(f"buffer_load_dwordx4 {ar(PQA+40*r+4*t,4)}, v2, {WS}, s{sT2} offen offset:{1024*(t&3)}", "pq")
    issue(1)
    e("v_bfe_u32 v5, v1, 2, 3\nv_and_b32 v6, 3, v1\nv_lshl_add_u32 v7, v5, 2, v6\nv_subrev_u32 v8, 4, v7")
    e("v_cmp_gt_u32 vcc, 20, v7\nv_cndmask_b32 v7, 20, v7, vcc\nv_cmp_gt_u32 vcc, 20, v8\nv_cndmask_b32 v8, 20, v8, vcc")
    e(f"v_lshrrev_b32 v9, 5, v1\nv_lshlrev_b32 v9, 4, v9\nv_add_u32 v9, s{sT1}, v9")
    e(f"v_mul_u32_u24 v7, 80, v7\nv_add_u32 v3, v7, v9\nv_mul_u32_u24 v8, 80, v8\nv_add_u32 v4, v8, v9\nv_subrev_u32 v4, 16, v4")
    for r in range(ACC2, ACC2 + 80):
        e(f"v_mov_b32 v{r}, 0")
    for r in (KW, KW + 1, KW + 8, KW + 9, KW + 16, KW + 17):
        e(f"v_mov_b32 v{r}, 0")
    e(f"s_lshl_b32 s{sT0}, s{sRB2}, 6\ns_lshl_b32 s{sT2}, s{sW2}, 4\ns_add_u32 s{sT0}, s{sT0}, s{sT2}")
    e(f"v_and_b32 v5, 15, v1\nv_add_u32 v5, s{sT0}, v5\nv_mul_u32_u24 v5, 1280, v5\nv_lshrrev_b32 v6, 4, v1\nv_lshl_add_u32 v5, v6, 3, v5")
    e(f"s_mul_i32 s{sT0}, s{sCB}, 160\nv_add_u32 v10, s{sT0}, v5")
    issue(2)

    def head(hh):
        odd = hh & 1
        win = KW + 2 + 8 * odd
        av = 4 if odd else 3
        base = hh * 1680
        for j in range(3):
            e(f"ds_read_b128 {vr(KF+4*j,4)}, v{av} offset:{base+32*j}")
        e("s_waitcnt lgkmcnt(0)")
        hv = 0 if odd else 2
        for j in range(3):
            for q in range(2):
                e(f"v_cvt_pk_bf16_f32 v{win+2*j+q}, v{KF+4*j+2*q}, v{KF+4*j+2*q+1}")
        for q in range(2):
            r = win + 2 * hv + q
            e(f"v_cndmask_b32 v{r}, 0, v{r}, s[{sHM}:{sHM+1}]" if odd else f"v_cndmask_b32 v{r}, v{r}, 0, s[{sHM}:{sHM+1}]")
        ka = win if (hh & 3) < 2 else win - 2
        t0 = (20 * hh) >> 4
        for r in range(2):
            e(f"v_mfma_f32_32x32x16_bf16 {vr(NN+16*r,16)}, {vr(ka,4)}, {ar(PQA+40*r+4*t0,4)}, 0")
        for r in range(2):
            e(f"v_mfma_f32_32x32x16_bf16 {vr(NN+16*r,16)}, {vr(ka+4,4)}, {ar(PQA+40*r+4*t0+4,4)}, {vr(NN+16*r,16)}")

    def head_fin(hh):
        odd = hh & 1
        for r in range(2):
            n = NN + 16 * r
            e(f"v_add_f32 v{TM+2*r}, {f2u(1e-6)}, v{n+12}")
        for r in range(2):
            e(f"v_rcp_f32 v{TM+2*r}, v{TM+2*r}")
        for r in range(2):
            e(f"v_mov_b32 v{TM+2*r+1}, v{TM+2*r}")
        for r in range(2):
            n = NN + 16 * r
            for p in range(6):
                e(f"v_pk_mul_f32 {vr(n+2*p,2)}, {vr(n+2*p,2)}, {vr(TM+2*r,2)}")
        for r in range(2):
            n = NN + 16 * r
            ob = OO + 40 * r + 10 * (hh >> 1) + (4 if odd else 0)
            for p in range(6):
                dst = ob + p if not (odd and p < 2) else TM + 4 + p
                e(f"v_cvt_pk_bf16_f32 v{dst}, v{n+2*p}, v{n+2*p+1}")
            if odd:
                for p in range(2):
                    e(f"v_cndmask_b32 v{ob+p}, v{ob+p}, v{TM+4+p}, s[{sHM}:{sHM+1}]")

    def mf(n):
        kind, m = seq[n]
        rb = RING + 36 * (n % DEPTH)
        for r in range(4):
            for c in range(5):
                hb = ar(rb + 4 * r, 4) if kind == "U" else vr(OO + 40 * (r >> 1) + 8 * m + 4 * (r & 1), 4)
                a = ACC2 + 4 * (5 * r + c)
                e(f"v_mfma_f32_16x16x32_bf16 {vr(a,4)}, {ar(rb+16+4*c,4)}, {hb}, {vr(a,4)}")

    for n in range(len(seq)):
        if n == 0:
            wait_vm("pq")
            stamp(e, cfg, 2)
        if n + 3 < len(seq):
            issue(n + 3)
        if n == len(seq) - 3:
            for c in range(5):
                vm(f"buffer_load_dwordx2 {vr(TM+8+2*c,2)}, v10, s[{SRD_X}:{SRD_X+3}], 0 offen offset:{32*c}", "x")
        if n < 8:
            head(n)
        wait_vm(n)
        mf(n)
        if n < 8:
            head_fin(n)
        if n == 7:
            for r in range(2):
                for u in range(5):
                    for i in range(4):
                        e(f"v_permlane16_swap_b32 v{OO+40*r+8*u+i}, v{OO+40*r+8*u+4+i}")
    stamp(e, cfg, 3)
    e(f"s_mul_i32 s{sT0}, s{sW2}, 20480\ns_add_u32 s{sT0}, s{sT0}, {K2_RED}\nv_add_u32 v3, s{sT0}, v2")
    e(f"s_mul_i32 s{sT0}, s{sW2}, 5120\ns_add_u32 s{sT0}, s{sT0}, {K2_RED}\nv_add_u32 v4, s{sT0}, v2\nv_add_u32 v5, 40960, v4")
    for k in range(20):
        e(f"ds_write_b128 v3, {vr(ACC2+4*k,4)} offset:{1024*k}")
        if k == 11:
            e("s_waitcnt lgkmcnt(6)")
    e("s_waitcnt lgkmcnt(0)\ns_barrier")
    for c in range(5):
        for w in range(4):
            e(f"ds_read_b128 {vr(OO+16*c+4*w,4)}, v{4+(w>>1)} offset:{20480*(w&1)+1024*c}")
        if c >= 2:
            e("s_waitcnt lgkmcnt(8)")
    e("s_waitcnt vmcnt(0)")
    for c in range(5):
        if c == 3:
            e("s_waitcnt lgkmcnt(0)")
        b = OO + 16 * c
        xr = TM + 8 + 2 * c
        e(f"v_lshlrev_b32 v12, 16, v{xr}\nv_and_b32 v13, 0xffff0000, v{xr}\nv_lshlrev_b32 v14, 16, v{xr+1}\nv_and_b32 v15, 0xffff0000, v{xr+1}")
        for h in range(2):
            e(f"v_pk_add_f32 {vr(b+2*h,2)}, {vr(b+2*h,2)}, {vr(b+4+2*h,2)}")
            e(f"v_pk_add_f32 {vr(b+8+2*h,2)}, {vr(b+8+2*h,2)}, {vr(b+12+2*h,2)}")
        for h in range(2):
            e(f"v_pk_add_f32 {vr(b+2*h,2)}, {vr(b+2*h,2)}, {vr(b+8+2*h,2)}")
        for h in range(2):
            e(f"v_pk_add_f32 {vr(b+2*h,2)}, {vr(b+2*h,2)}, {vr(12+2*h,2)}")
        e(f"v_cvt_pk_bf16_f32 v{b+4}, v{b}, v{b+1}\nv_cvt_pk_bf16_f32 v{b+5}, v{b+2}, v{b+3}")
        e(f"buffer_store_dwordx2 {vr(b+4,2)}, v10, s[{SRD_A}:{SRD_A+3}], 0 offen offset:{32*c} {cfg.out_flags}")
    stamp(e, cfg, 4)
    stamp_flush(e, cfg, 1, 5, sW2)
    e("L_k2_end:\ns_endpgm")
    return e.l


def desc(name, nv, acc):
    return (f".p2align 6\n.amdhsa_kernel {name}\n  .amdhsa_next_free_vgpr {nv}\n  .amdhsa_next_free_sgpr 102\n"
            f"  .amdhsa_accum_offset {acc}\n  .amdhsa_group_segment_fixed_size 0\n  .amdhsa_kernarg_size 72\n"
            "  .amdhsa_user_sgpr_count 2\n  .amdhsa_user_sgpr_kernarg_segment_ptr 1\n  .amdhsa_system_sgpr_workgroup_id_x 1\n"
            "  .amdhsa_float_denorm_mode_32 3\n.end_amdhsa_kernel")


def build(cfg, verbose=False):
    out = [f"; @launch kernel=k1_kernel grid=(256,1,1) block=(256,1,1) lds={K1_LDS}",
           f"; @launch kernel=k2_kernel grid=(256,1,1) block=(256,1,1) lds={K2_LDS}",
           '.amdgcn_target "amdgcn-amd-amdhsa--gfx950"', ".text"]
    for nm, fn in (("k1_kernel", kernel1), ("k2_kernel", kernel2)):
        log = []
        body = pad_hazards(fn(cfg), log)
        errs = check_waits(body, nm)
        for x in errs:
            print("CHECK", x, file=sys.stderr)
        if verbose:
            print(nm, "instructions:", len(body), "pads:", len(log), file=sys.stderr)
            for x in log:
                print("   pad", x, file=sys.stderr)
        out += [f".globl {nm}", ".p2align 8", f".type {nm},@function"]
        out += [x if x.endswith(":") else "    " + x for x in body]
    out.append('.section .rodata,"a"')
    out.append(desc("k1_kernel", 256, 256))
    out.append(desc("k2_kernel", 480, 256))
    return "\n".join(out) + "\n"


if __name__ == "__main__":
    cfg = Cfg()
    path = sys.argv[1]
    for kv in sys.argv[2:]:
        if kv == "-v":
            continue
        k, v = kv.split("=")
        setattr(cfg, k, v if k.endswith("flags") else int(v))
    open(path, "w").write(build(cfg, "-v" in sys.argv))
```

```python
import sys
from asmlib import *
from layout import *

NAME = "parallel_sum__linear_attn_block__dense_activation_silu__prompt"
LOG2E = 0x3FB8AA3B
OOB = 0x40000000


def f2u(x):
    import struct
    return struct.unpack("<I", struct.pack("<f", x))[0]


class Cfg:
    stamps = False
    rot1 = 0
    out_flags = ""
    st_flags = "sc1"
    drop = ""


STG = 45056
XSZ = 16384
BLK = 7168
CS_L = 3 * STG
RP_L = CS_L + 1024
K1_LDS = RP_L + 3 * 8192
PK_L, V_L = 0, 25600

ACC = 16
XF = (128, 132)
WF = (136, 164)
CSA = 192
SA, GA, ONES = 220, 224, 228
VX, VW = 230, 234
AX, AA, AB = 241, 245, 246

sW, sRB, sHG, sTY, sK, sST, sX, sA, sB, sDL, sRD = 52, 53, 54, 55, 56, 57, 58, 59, 60, 61, 62
sT0, sT1, sT2, sT3 = 63, 64, 65, 66
sNX, sNA, sNB = 67, 68, 69
sHS = 70
sSTG = 71
SRD_X, SRD_A, SRD_B, SRD_WS, SRD_KV, SRD_DBG, SRD_RP = 24, 28, 32, 36, 40, 44, 48


def srd(e, d, base, size):
    e(f"s_mov_b32 s{d}, s{base}\ns_mov_b32 s{d+1}, s{base+1}\ns_mov_b32 s{d+2}, {size}\ns_mov_b32 s{d+3}, 0x20000")


def stamp(e, cfg, idx):
    if cfg.stamps:
        e(f"s_memrealtime s[{72+2*idx}:{73+2*idx}]\ns_memtime s[{84+2*idx}:{85+2*idx}]")


def stamp_flush(e, cfg, kernel, n, swave):
    if not cfg.stamps:
        return
    e("s_waitcnt vmcnt(0) lgkmcnt(0)")
    e(f"s_memrealtime s[{72+2*n}:{73+2*n}]\ns_memtime s[{84+2*n}:{85+2*n}]\ns_waitcnt lgkmcnt(0)")
    e(f"s_lshl_b32 s3, s2, 2\ns_add_u32 s3, s3, s{swave}\ns_lshl_b32 s3, s3, 6\ns_add_u32 s3, s3, {ST_OFF + kernel*65536}")
    e("v_mov_b32 v1, 0")
    for i in range(n + 1):
        e(f"v_writelane_b32 v1, s{72+2*i}, {i}\nv_writelane_b32 v1, s{84+2*i}, {8+i}")
    e("v_mbcnt_lo_u32_b32 v2, -1, 0\nv_mbcnt_hi_u32_b32 v2, -1, v2\nv_lshlrev_b32 v3, 2, v2")
    e("v_cmp_gt_u32 vcc, 16, v2\ns_and_saveexec_b64 s[96:97], vcc")
    e(f"buffer_store_dword v1, v3, s[{SRD_WS}:{SRD_WS+3}], s3 offen\ns_waitcnt vmcnt(0)")


def k1_dma_items(ty):
    nA = 5 if ty == 0 else 3
    it = []
    it.append(f"s_add_u32 m0, s{sDL}, s{sT3}")
    for i in range(4):
        it.append(f"buffer_load_dwordx4 v{VX+i}, s[{SRD_X}:{SRD_X+3}], s{sX} offen offset:{1024*i} lds")
    groups = [(0, 4), (4, 5), (5, 7)] if ty == 0 else [(0, 3), (3, 7)]
    for a, b in groups:
        it.append(f"s_add_u32 m0, s{sDL}, s{sT2}" if a == 0 else f"s_add_u32 m0, m0, {1024*(a-prev)}")
        prev = a
        for i in range(a, b):
            s, so = (SRD_A, sA) if i < nA else (SRD_B, sB)
            it.append(f"buffer_load_dwordx4 v{VW+i}, s[{s}:{s+3}], s{so} offen offset:{1024*(i-a)} lds")
    return it


def k1_advance():
    return [f"s_add_u32 s{sK}, s{sK}, 1", f"s_cmp_eq_u32 s{sK}, 10", f"s_cselect_b32 s{sK}, 0, s{sK}",
            f"s_lshl_b32 s{sX}, s{sK}, 7", f"s_mul_i32 s{sA}, s{sK}, {64*3840}", f"s_mul_i32 s{sB}, s{sK}, {64*3072}",
            f"s_add_u32 s{sDL}, s{sDL}, {STG}", f"s_cmp_eq_u32 s{sDL}, {3*STG}", f"s_cselect_b32 s{sDL}, 0, s{sDL}"]


def k1_reads(ty, t, P):
    nAt = 5 if ty == 0 else 3
    pA = 320 if ty == 0 else 192
    pB = 128 if ty == 0 else 256
    offB = 16 * pA
    r = [f"ds_read_b128 {vr(XF[P],4)}, v{AX+t}"]
    for tau in range(7):
        w = WF[P] + 4 * tau
        if tau < nAt:
            o = t * BLK + tau * 64
            r.append(f"ds_read_b64_tr_b16 {vr(w,2)}, v{AA} offset:{o}")
            r.append(f"ds_read_b64_tr_b16 {vr(w+2,2)}, v{AA} offset:{o+4*pA}")
        else:
            o = t * BLK + offB
            r.append(f"ds_read_b64_tr_b16 {vr(w,2)}, v{AB+tau-nAt} offset:{o}")
            r.append(f"ds_read_b64_tr_b16 {vr(w+2,2)}, v{AB+tau-nAt} offset:{o+4*pB}")
    return r


def k1_setup(e, ty):
    nA = 5 if ty == 0 else 3
    cpr = 20 if ty == 0 else 12
    magic = 3277 if ty == 0 else 5462
    pA = cpr * 16
    for i in range(nA):
        e(f"v_add_u32 v2, {64*i}, v1\nv_mul_u32_u24 v3, {magic}, v2\nv_lshrrev_b32 v3, 16, v3")
        e(f"v_mul_u32_u24 v4, {cpr}, v3\nv_sub_u32 v4, v2, v4")
        e("v_cmp_lt_u32 vcc, 9, v4")
        if ty == 0:
            e(f"v_mov_b32 v5, {1280}\nv_mov_b32 v6, {2560-160}\nv_cndmask_b32 v5, v5, v6, vcc")
        else:
            e("v_mov_b32 v5, 0\nv_mov_b32 v6, -32\nv_cndmask_b32 v5, v5, v6, vcc")
        e(f"v_lshl_add_u32 v5, v4, 4, v5\nv_add_u32 v3, s{sT0}, v3\nv_mul_u32_u24 v3, 3840, v3\nv_add_u32 v5, v5, v3")
        imm = 1024 * (i if i < 4 else i - 4)
        e(f"v_add_u32 v5, s{sT1}, v5")
        e(f"v_subrev_u32 v{VW+i}, {imm}, v5" if imm else f"v_mov_b32 v{VW+i}, v5")
    lg = 3 if ty == 0 else 4
    for i in range(7 - nA):
        e(f"v_add_u32 v2, {64*i}, v1\nv_lshrrev_b32 v3, {lg}, v2\nv_and_b32 v4, {(1<<lg)-1}, v2")
        if ty == 0:
            e("v_bfe_u32 v5, v3, 1, 1")
        else:
            e("v_and_b32 v5, 3, v3")
        e(f"v_lshlrev_b32 v5, 2, v5\nv_xor_b32 v4, v4, v5\nv_add_u32 v3, s{sT0}, v3\nv_mul_u32_u24 v3, 3072, v3")
        e(f"v_lshl_add_u32 v5, v4, 4, v3\nv_add_u32 v5, s{sHS}, v5")
        imm = 1024 * i
        e(f"v_subrev_u32 v{VW+nA+i}, {imm}, v5" if imm else f"v_mov_b32 v{VW+nA+i}, v5")


def k1_read_addrs(e, ty):
    pA = 320 if ty == 0 else 192
    pB = 128 if ty == 0 else 256
    e("v_lshrrev_b32 v2, 5, v1\nv_lshlrev_b32 v2, 3, v2\nv_bfe_u32 v4, v1, 2, 2\nv_add_u32 v2, v2, v4")
    e("v_bfe_u32 v3, v1, 4, 1\nv_lshlrev_b32 v3, 5, v3\nv_and_b32 v5, 3, v1\nv_lshl_add_u32 v3, v5, 3, v3")
    e(f"v_mul_u32_u24 v5, {pA}, v2\nv_add_u32 v5, v5, v3\nv_add_u32 v{AA}, {XSZ}, v5")
    e(f"v_mul_u32_u24 v5, {pB}, v2\nv_add_u32 v5, v5, v3\nv_add_u32 v5, {XSZ}, v5")
    e("v_lshrrev_b32 v6, 1, v4" if ty == 0 else "v_mov_b32 v6, v4")
    for k in range(2 if ty == 0 else 4):
        e(f"v_xor_b32 v7, {k}, v6\nv_lshl_add_u32 v{AB+k}, v7, 6, v5")
    e(f"v_and_b32 v2, 31, v1\nv_bfe_u32 v3, v1, 1, 3\nv_lshrrev_b32 v4, 5, v1\nv_lshlrev_b32 v2, 7, v2\nv_add_u32 v2, s{sT3}, v2")
    for t in range(4):
        e(f"v_add_u32 v5, {2*t}, v4\nv_xor_b32 v5, v5, v3\nv_lshl_add_u32 v{AX+t}, v5, 4, v2")


def k1_loop(e, ty):
    nB = 2 if ty == 0 else 4
    tag = f"k1t{ty}"
    dma = k1_dma_items(ty)
    loads = [i for i, x in enumerate(dma) if x.startswith("buffer")]
    cuts = [0, loads[2] + 1, loads[5] + 1, loads[8] + 1, len(dma)]
    dgrp = [dma[cuts[i]:cuts[i + 1]] for i in range(4)]
    e(f"L_{tag}_loop:")
    for t in range(4):
        P = t & 1
        X = XF[P]
        big = [f"v_mfma_f32_32x32x16_bf16 {vr(ACC+16*k,16)}, {vr(WF[P]+4*k,4)}, {vr(X,4)}, {vr(ACC+16*k,16)}" for k in range(7)]
        s1 = f"v_mfma_f32_4x4x4_16b_bf16 {vr(SA,4)}, {vr(ONES,2)}, {vr(X,2)}, {vr(SA,4)}"
        g1 = f"v_mfma_f32_4x4x4_16b_bf16 {vr(GA,4)}, {vr(X,2)}, {vr(X,2)}, {vr(GA,4)}"
        s2 = f"v_mfma_f32_4x4x4_16b_bf16 {vr(SA,4)}, {vr(ONES,2)}, {vr(X+2,2)}, {vr(SA,4)}"
        g2 = f"v_mfma_f32_4x4x4_16b_bf16 {vr(GA,4)}, {vr(X+2,2)}, {vr(X+2,2)}, {vr(GA,4)}"
        rd = k1_reads(ty, (t + 1) & 3, P ^ 1)
        d = dgrp[(t + 1) & 3]
        tail = list(d)
        if t == 2:
            tail += k1_advance()
            tail += [f"s_add_u32 s{sST}, s{sST}, 1", f"s_cmp_ge_u32 s{sST}, 8",
                     f"s_cselect_b32 s{SRD_X+2}, 0, s{sNX}", f"s_cselect_b32 s{SRD_A+2}, 0, s{sNA}", f"s_cselect_b32 s{SRD_B+2}, 0, s{sNB}"]
            tail += [f"s_add_u32 s{sRD}, s{sRD}, 1", f"s_cmp_eq_u32 s{sRD}, 3", f"s_cselect_b32 s{sRD}, 0, s{sRD}",
                     f"s_cselect_b32 s{sT0}, {-2*STG & 0xffffffff}, s{sSTG}"]
            tail += [f"v_add_u32 v{r}, s{sT0}, v{r}" for r in [AX, AX + 1, AX + 2, AX + 3, AA] + [AB + k for k in range(nB)]]
        e("s_waitcnt lgkmcnt(0)")
        e(big[0])
        if t == 3:
            e("s_waitcnt vmcnt(11)\ns_barrier")
        e.ext(rd[0:3]); e(big[1]); e.ext(rd[3:6]); e(s1); e(g1); e(big[2]); e.ext(rd[6:9]); e(big[3]); e.ext(rd[9:12])
        e(s2); e(g2); e(big[4]); e.ext(rd[12:15]); e(big[5])
        h = (len(tail) + 1) // 2
        e.ext(tail[:h]); e(big[6]); e.ext(tail[h:])
        e(f"s_cmp_lg_u32 s{sW}, {t}\ns_cbranch_scc1 L_{tag}_nocs{t}")
        for hh in range(2):
            for k in range(7):
                e(f"v_mfma_f32_4x4x4_16b_bf16 {vr(CSA+4*k,4)}, {vr(ONES,2)}, {vr(WF[P]+4*k+2*hh,2)}, {vr(CSA+4*k,4)}")
        e(f"L_{tag}_nocs{t}:")
    e(f"s_cmp_lt_u32 s{sST}, 10\ns_cbranch_scc1 L_{tag}_loop")


NM, RS, K1P, K1N, IRS, DEL = 128, 130, 132, 134, 136, 138
CSV = 140
TU, TE = 172, 180
PKD = 188
VH, VQ, VCS = 230, 231, 232


def ep_cs_reads(tau, buf):
    return [f"ds_read_b128 {vr(CSV+16*buf+4*a,4)}, v{VCS} offset:{128*tau+32*a}" for a in range(4)]


def ep_two_quads(kind, acc, cs, out):
    o = []
    for p in range(4):
        o.append(f"v_pk_fma_f32 {vr(TU+2*p,2)}, {vr(cs+2*p,2)}, {vr(NM,2)}, {vr(acc+2*p,2)}")
    if kind == "v":
        for p in range(4):
            o.append(f"v_pk_mul_f32 {vr(TU+2*p,2)}, {vr(TU+2*p,2)}, {vr(RS,2)}")
    elif kind == "phi":
        for p in range(4):
            o.append(f"v_pk_mul_f32 {vr(TE+2*p,2)}, {vr(TU+2*p,2)}, {vr(K1P,2)}")
        for i in range(8):
            o.append(f"v_exp_f32_e64 v{TE+i}, v{TE+i} clamp")
            o.append(f"v_max_f32 v{TU+i}, v{DEL}, v{TU+i}")
        for p in range(4):
            o.append(f"v_pk_fma_f32 {vr(TU+2*p,2)}, {vr(TU+2*p,2)}, {vr(RS,2)}, {vr(TE+2*p,2)}")
    else:
        for p in range(4):
            o.append(f"v_pk_mul_f32 {vr(TE+2*p,2)}, {vr(TU+2*p,2)}, {vr(K1N,2)}")
        for i in range(8):
            o.append(f"v_exp_f32 v{TE+i}, v{TE+i}")
        for p in range(4):
            o.append(f"v_pk_fma_f32 {vr(TE+2*p,2)}, {vr(TE+2*p,2)}, {vr(IRS,2)}, {vr(IRS,2)}")
        for i in range(8):
            o.append(f"v_rcp_f32 v{TE+i}, v{TE+i}")
        for p in range(4):
            o.append(f"v_pk_mul_f32 {vr(TU+2*p,2)}, {vr(TU+2*p,2)}, {vr(TE+2*p,2)}")
    for p in range(4):
        o.append(f"v_cvt_pk_bf16_f32 v{out+p}, v{TU+2*p}, v{TU+2*p+1}")
    return o


def k1_epilogue(e, ty, cfg):
    tag = f"k1t{ty}"
    st = cfg.st_flags
    e(f"s_waitcnt lgkmcnt(0)\nv_and_b32 v2, 31, v1\nv_lshlrev_b32 v2, 2, v2\nv_add_u32 v2, {CS_L}, v2")
    for k in range(7):
        e(f"ds_add_f32 v2, v{CSA+4*k} offset:{128*k}")
    e(f"v_and_b32 v3, 3, v1\nv_cmp_eq_u32 vcc, 1, v3\nv_cndmask_b32 v4, v{GA}, v{GA+1}, vcc")
    e(f"v_cmp_eq_u32 vcc, 2, v3\nv_cndmask_b32 v4, v4, v{GA+2}, vcc\nv_cmp_eq_u32 vcc, 3, v3\nv_cndmask_b32 v4, v4, v{GA+3}, vcc")
    e(f"v_mov_b32 v5, v4\nv_mov_b32 v6, v{SA}\nv_mov_b32 v7, v{SA}")
    e("v_permlane32_swap_b32 v4, v5\nv_permlane32_swap_b32 v6, v7\nv_add_f32 v4, v4, v5\nv_add_f32 v6, v6, v7")
    c = f2u(1.0 / 640)
    e(f"v_mul_f32 v6, {c}, v6\nv_mul_f32 v4, {c}, v4\nv_fma_f32 v4, -v6, v6, v4\nv_max_f32 v4, 0, v4\nv_add_f32 v4, {f2u(1e-5)}, v4")
    e(f"v_rsq_f32 v{RS}, v4\nv_sub_f32 v{NM}, 0, v6\nv_sub_f32 v{NM+1}, 0, v6")
    e(f"v_mov_b32 v{RS+1}, v{RS}\nv_mul_f32 v{IRS}, v4, v{RS}\nv_mul_f32 v{IRS+1}, v4, v{RS}")
    e(f"v_mul_f32 v{K1P}, {LOG2E}, v{RS}\nv_mul_f32 v{K1P+1}, {LOG2E}, v{RS}")
    e(f"v_sub_f32 v{K1N}, 0, v{K1P}\nv_sub_f32 v{K1N+1}, 0, v{K1P}\nv_mul_f32 v{DEL}, {f2u(1e-6)}, v{IRS}")
    e(f"v_lshrrev_b32 v2, 5, v1\nv_lshlrev_b32 v{VCS}, 4, v2\nv_add_u32 v{VCS}, {CS_L}, v{VCS}")
    e(f"v_bfe_u32 v3, v1, 4, 1\nv_mul_u32_u24 v3, 49152, v3\nv_and_b32 v4, 15, v1\nv_lshl_add_u32 v3, v4, 4, v3\nv_lshl_add_u32 v{VH}, v2, 9, v3")
    e(f"v_lshlrev_b32 v{VQ}, 4, v1")
    ksb = 0 if ty == 0 else 8
    e(f"s_lshl_b32 s{sT0}, s{sRB}, 2\ns_add_u32 s{sT0}, s{sT0}, s{sW}\ns_mul_i32 s{sT1}, s{sT0}, {2*49152}")
    e(f"s_lshr_b32 s{sT2}, s{sHG}, 2\ns_mul_i32 s{sT2}, s{sT2}, {24*1024}\ns_add_u32 s{sT1}, s{sT1}, s{sT2}")
    e(f"s_and_b32 s{sT2}, s{sHG}, 3\ns_lshl_b32 s{sT2}, s{sT2}, {11 if ty == 0 else 12}\ns_add_u32 s{sT1}, s{sT1}, s{sT2}")
    e(f"s_add_u32 s{sHS}, s{sT1}, {HP_OFF + ksb*1024}")
    e("s_waitcnt vmcnt(0) lgkmcnt(0)\ns_barrier")

    def h_tile(tau, k, buf):
        for p in range(2):
            e.ext(ep_two_quads("silu", ACC + 16 * tau + 8 * p, CSV + 16 * buf + 8 * p, PKD + 4 * p))
            e(f"buffer_store_dwordx4 {vr(PKD+4*p,4)}, v{VH}, s[{SRD_WS}:{SRD_WS+3}], s{sHS} offen offset:{1024*k+256*p} {st}")

    if ty == 1:
        e(f"s_lshl_b32 s{sT1}, s{sRB}, 3\ns_add_u32 s{sT1}, s{sT1}, s{sHG}\ns_mul_i32 s{sT1}, s{sT1}, 3\ns_add_u32 s{sK}, s{sT1}, s{sW}")
        e(f"s_cmp_eq_u32 s{sW}, 3\ns_cselect_b32 s{sK}, 340, s{sK}")
        e(f"s_cmp_ge_u32 s{sK}, 340\ns_cbranch_scc1 L_{tag}_norp1")
        e(f"s_mul_i32 s{sX}, s{sK}, 52429\ns_lshr_b32 s{sX}, s{sX}, 18\ns_mul_i32 s{sT1}, s{sX}, 5\ns_sub_u32 s{sA}, s{sK}, s{sT1}")
        e(f"s_cmp_ge_u32 s{sX}, 48\ns_cselect_b32 s{SRD_RP}, s8, s14\ns_cselect_b32 s{SRD_RP+1}, s9, s15")
        e(f"s_cselect_b32 s{SRD_RP+2}, {640*1280}, s{sNB}\ns_cselect_b32 s{sT1}, 48, 0\ns_mov_b32 s{SRD_RP+3}, 0x20000")
        e(f"s_sub_u32 s{sT1}, s{sX}, s{sT1}\ns_mul_i32 s{sT1}, s{sT1}, {32*1280}\ns_lshl_b32 s{sT2}, s{sA}, 8\ns_add_u32 s{sB}, s{sT1}, s{sT2}")
        e(f"s_lshl_b32 s{sDL}, s{sW}, 13\ns_add_u32 s{sDL}, s{sDL}, {RP_L}")
        e("v_lshrrev_b32 v2, 4, v1\nv_and_b32 v3, 15, v1\nv_lshlrev_b32 v4, 1, v2\nv_xor_b32 v3, v3, v4\nv_mul_u32_u24 v2, 1280, v2")
        e("v_lshl_add_u32 v8, v3, 4, v2\nv_xor_b32 v3, 8, v3\nv_lshl_add_u32 v9, v3, 4, v2")
        for i in range(8):
            e(f"s_add_u32 m0, s{sDL}, {1024*i}\ns_add_u32 s{sT1}, s{sB}, {5120*i}")
            e(f"buffer_load_dwordx4 v{8 if i < 4 else 9}, s[{SRD_RP}:{SRD_RP+3}], s{sT1} offen lds")
        e(f"L_{tag}_norp1:")
        e(f"s_mul_i32 s{sT1}, s{sT0}, {40*1024}\ns_mul_i32 s{sT2}, s{sHG}, {5*1024}\ns_add_u32 s{sT1}, s{sT1}, s{sT2}\ns_add_u32 s{sRD}, s{sT1}, {QP_OFF}")
        order = [3, 4, 5, 6, 0, 1, 2]
        e.ext(ep_cs_reads(order[0], 0))
        for n, tau in enumerate(order):
            buf = n & 1
            if n + 1 < 7:
                e.ext(ep_cs_reads(order[n + 1], buf ^ 1))
                e("s_waitcnt lgkmcnt(4)")
            else:
                e("s_waitcnt lgkmcnt(0)")
            if tau >= 3:
                h_tile(tau, tau - 3, buf)
            else:
                for p in range(2 if tau < 2 else 1):
                    t = 2 * tau + p
                    e.ext(ep_two_quads("phi", ACC + 16 * tau + 8 * p, CSV + 16 * buf + 8 * p, PKD + 4 * p))
                    if t == 4:
                        e(f"s_add_u32 s{sRD}, s{sRD}, 4096")
                    e(f"buffer_store_dwordx4 {vr(PKD+4*p,4)}, v{VQ}, s[{SRD_WS}:{SRD_WS+3}], s{sRD} offen offset:{1024*(t&3)} {st}")
        e(f"s_cmp_ge_u32 s{sK}, 340\ns_cbranch_scc1 L_{tag}_norp2")
        e("v_bfe_u32 v2, v1, 4, 1\nv_lshrrev_b32 v3, 5, v1\nv_bfe_u32 v4, v1, 2, 2")
        e("v_lshlrev_b32 v5, 4, v2\nv_lshl_add_u32 v5, v3, 2, v5\nv_add_u32 v5, v5, v4")
        e("v_lshl_add_u32 v6, v2, 2, v4\nv_lshlrev_b32 v6, 5, v6\nv_lshl_add_u32 v6, v5, 8, v6")
        e(f"v_and_b32 v7, 3, v1\nv_lshl_add_u32 v6, v7, 3, v6\nv_add_u32 v6, s{sDL}, v6")
        e("s_waitcnt vmcnt(13)")
        for c in range(8):
            e(f"v_xor_b32 v7, {32*c}, v6")
            e(f"ds_read_b64_tr_b16 {vr(16+4*c,2)}, v7\nds_read_b64_tr_b16 {vr(18+4*c,2)}, v7 offset:2048")
        for c in range(8):
            e(f"s_lshl_b32 s{sT0}, s{sA}, 3\ns_add_u32 s{sT0}, s{sT0}, {c}\ns_mul_i32 s{sT1}, s{sT0}, 52429\ns_lshr_b32 s{sT1}, s{sT1}, 18")
            e(f"s_mul_i32 s{sT2}, s{sT1}, 335\ns_add_u32 s{sT2}, s{sT2}, s{sT0}\ns_mul_i32 s{sT1}, s{sX}, 5\ns_add_u32 s{sT2}, s{sT2}, s{sT1}")
            e(f"s_lshl_b32 s{sT2}, s{sT2}, 10\ns_add_u32 s{sT2}, s{sT2}, {WP_OFF}")
            e(f"s_waitcnt lgkmcnt({14-2*c})")
            e(f"buffer_store_dwordx4 {vr(16+4*c,4)}, v{VQ}, s[{SRD_WS}:{SRD_WS+3}], s{sT2} offen {st}")
        e(f"L_{tag}_norp2:")
    else:
        e(f"v_and_b32 v3, 31, v1\ns_lshl_b32 s{sT1}, s{sW}, 5\nv_add_u32 v3, s{sT1}, v3\nv_mul_u32_u24 v3, 200, v3")
        e("v_lshrrev_b32 v2, 5, v1\nv_lshl_add_u32 v8, v2, 3, v3\nv_lshl_add_u32 v9, v2, 4, v3")
        e("v_mul_u32_u24 v4, 96, v2\nv_add_u32 v4, v4, v3\nv_mov_b32 v10, 0x3f80\nv_mov_b32 v11, 0")
        e(f"ds_write_b64 v4, v[10:11] offset:{V_L+40}\nds_write_b64 v4, v[10:11] offset:{V_L+88}")
        e(f"s_lshl_b32 s{sT1}, s{sHG}, 2\nv_mov_b32 v12, s{sT1}")
        e(f"buffer_load_dword v13, v12, s[{SRD_DBG}:{SRD_DBG+3}], 0 offen sc1")
        e.ext(ep_cs_reads(0, 0))
        for tau in range(5):
            buf = tau & 1
            e.ext(ep_cs_reads(tau + 1, buf ^ 1))
            e("s_waitcnt lgkmcnt(4)")
            for p in range(2):
                a0 = 4 * tau + 2 * p
                kind = "phi" if a0 < 10 else "v"
                e.ext(ep_two_quads(kind, ACC + 16 * tau + 8 * p, CSV + 16 * buf + 8 * p, PKD + 4 * p))
                for q in range(2):
                    a = a0 + q
                    base = PK_L if a < 10 else V_L
                    Q = 2 * (a % 10)
                    off = base + (Q // 5) * 48 + (Q % 5) * 8
                    e(f"ds_write_b64 v{9 if Q % 5 == 4 else 8}, {vr(PKD+4*p+2*q,2)} offset:{off}")
        e.ext(ep_cs_reads(6, 0))
        e("s_waitcnt lgkmcnt(0)\ns_barrier")
        e("v_bfe_u32 v2, v1, 2, 2\nv_lshlrev_b32 v2, 3, v2\nv_lshrrev_b32 v3, 5, v1\nv_lshl_add_u32 v2, v3, 1, v2\nv_mul_u32_u24 v2, 200, v2")
        e(f"v_bfe_u32 v4, v1, 4, 1\nv_lshl_add_u32 v2, v4, 5, v2\nv_and_b32 v4, 3, v1\nv_lshl_add_u32 v2, v4, 3, v2\ns_mul_i32 s{sT1}, s{sW}, 48\nv_add_u32 v2, s{sT1}, v2")
        KB = 16
        for half in range(2):
            for m in range(4 * half, 4 * half + 4):
                o = (m >> 1) * 6400 + (m & 1) * 800
                r = KB + 8 * m
                e(f"ds_read_b64_tr_b16 {vr(r,2)}, v2 offset:{V_L+o}\nds_read_b64_tr_b16 {vr(r+2,2)}, v2 offset:{V_L+o+200}")
                e(f"ds_read_b64_tr_b16 {vr(r+4,2)}, v2 offset:{PK_L+o}\nds_read_b64_tr_b16 {vr(r+6,2)}, v2 offset:{PK_L+o+200}")
                if m >= 2:
                    e("s_waitcnt lgkmcnt(8)")
                    mm = m - 2
                    e(f"v_mfma_f32_32x32x16_bf16 v[80:95], {vr(KB+8*mm,4)}, {vr(KB+8*mm+4,4)}, {'0' if mm == 0 else 'v[80:95]'}")
        e(f"s_waitcnt lgkmcnt(4)\nv_mfma_f32_32x32x16_bf16 v[80:95], {vr(KB+48,4)}, {vr(KB+52,4)}, v[80:95]")
        e(f"s_waitcnt lgkmcnt(0)\nv_mfma_f32_32x32x16_bf16 v[80:95], {vr(KB+56,4)}, {vr(KB+60,4)}, v[80:95]")
        e(f"v_and_b32 v4, 31, v1\nv_mul_u32_u24 v5, 320, v3\nv_lshl_add_u32 v5, v4, 2, v5")
        e(f"s_lshl_b32 s{sT1}, s{sHG}, 2\ns_add_u32 s{sT1}, s{sT1}, s{sW}\ns_mul_i32 s{sT1}, s{sT1}, 1680")
        e(f"v_mov_b32 v6, {OOB}\nv_cmp_gt_u32 vcc, 20, v4\nv_cndmask_b32 v14, v6, v5, vcc\nv_cmp_gt_u32 vcc, 20, v1\nv_cndmask_b32 v15, v6, v5, vcc")
        e(f"L_{tag}_poll:\ns_waitcnt vmcnt(0)\nv_readfirstlane_b32 s{sT2}, v13\ns_cmp_lg_u32 s{sT2}, 0\ns_cbranch_scc1 L_{tag}_go")
        e(f"s_add_u32 s{sST}, s{sST}, 1\ns_cmp_gt_u32 s{sST}, 0x100000\ns_cbranch_scc1 L_{tag}_go")
        e(f"s_sleep 2\nbuffer_load_dword v13, v12, s[{SRD_DBG}:{SRD_DBG+3}], 0 offen sc1\ns_branch L_{tag}_poll")
        e(f"L_{tag}_go:")
        for i in range(12):
            e(f"buffer_atomic_add_f32 v{80+i}, v{14 if i < 9 else 15}, s[{SRD_KV}:{SRD_KV+3}], s{sT1} offen offset:{(8*(i>>2)+(i&3))*80}")
        h_tile(5, 0, 1)
        h_tile(6, 1, 0)


def kernel1(cfg):
    e = Em()
    e("k1_kernel:")
    stamp(e, cfg, 0)
    e("s_cmp_ge_u32 s2, 256\ns_cbranch_scc1 L_k1_end")
    e("s_load_dwordx16 s[4:19], s[0:1], 0\ns_load_dwordx2 s[20:21], s[0:1], 64")
    e(f"v_and_b32 v1, 63, v0\nv_lshrrev_b32 v2, 6, v0\nv_readfirstlane_b32 s{sW}, v2")
    e(f"s_and_b32 s{sT0}, s2, 7\ns_lshr_b32 s{sT1}, s2, 3")
    e(f"s_lshr_b32 s{sT2}, s{sT0}, 1\ns_lshl_b32 s{sT2}, s{sT2}, 2\ns_and_b32 s{sRB}, s{sT1}, 3\ns_add_u32 s{sRB}, s{sRB}, s{sT2}")
    e(f"s_and_b32 s{sT0}, s{sT0}, 1\ns_lshr_b32 s{sT2}, s{sT1}, 3\ns_lshl_b32 s{sHG}, s{sT0}, 2\ns_add_u32 s{sHG}, s{sHG}, s{sT2}")
    e(f"s_bfe_u32 s{sTY}, s{sT1}, 0x10002")
    e(f"s_mul_i32 s{sHS}, s{sT0}, 1536\ns_lshl_b32 s{sT3}, s{sT2}, 7\ns_lshl_b32 s{sT3}, s{sT3}, s{sTY}\ns_add_u32 s{sHS}, s{sHS}, s{sT3}")
    e(f"s_lshl_b32 s{sT3}, s{sTY}, 9\ns_add_u32 s{sHS}, s{sHS}, s{sT3}")
    if cfg.rot1 == 0:
        e(f"s_mov_b32 s{sK}, 0")
    elif cfg.rot1 == 1:
        e(f"s_lshr_b32 s{sK}, s{sT1}, 2\ns_xor_b32 s{sK}, s{sK}, s{sT1}\ns_and_b32 s{sK}, s{sK}, 1\ns_mul_i32 s{sK}, s{sK}, 5")
    elif cfg.rot1 == 2:
        e(f"s_lshr_b32 s{sK}, s{sT1}, 2\ns_and_b32 s{sT3}, s{sT1}, 3\ns_lshl_b32 s{sT3}, s{sT3}, 1\ns_add_u32 s{sK}, s{sK}, s{sT3}\ns_and_b32 s{sK}, s{sK}, 7")
    e(f"s_lshl_b32 s{sX}, s{sK}, 7\ns_mul_i32 s{sA}, s{sK}, {64*3840}\ns_mul_i32 s{sB}, s{sK}, {64*3072}")
    e(f"s_mov_b32 s{sDL}, 0\ns_mov_b32 s{sRD}, 0\ns_mov_b32 s{sST}, 0\ns_mov_b32 s{sSTG}, {STG}")
    e(f"s_mov_b32 s{sNX}, {S*D*2}\ns_mov_b32 s{sNA}, {D*1920*2}\ns_mov_b32 s{sNB}, {D*F*2}")
    e(f"s_lshl_b32 s{sT0}, s{sRB}, 7\ns_lshl_b32 s{sT1}, s{sW}, 5\ns_add_u32 s{sT0}, s{sT0}, s{sT1}")
    e(f"v_lshrrev_b32 v2, 3, v1\nv_add_u32 v2, s{sT0}, v2\nv_mul_u32_u24 v2, 1280, v2\nv_lshrrev_b32 v3, 4, v1\nv_and_b32 v4, 7, v1\nv_xor_b32 v3, v3, v4")
    e(f"v_lshl_add_u32 v{VX}, v3, 4, v2\nv_xor_b32 v3, 4, v3\nv_lshl_add_u32 v4, v3, 4, v2")
    e(f"v_add_u32 v{VX+1}, 9216, v4\nv_add_u32 v{VX+2}, {2*9216}, v{VX}\nv_add_u32 v{VX+3}, {3*9216}, v4")
    e(f"s_lshl_b32 s{sT0}, s{sW}, 4\ns_mul_i32 s{sT1}, s{sHG}, 160")
    e(f"s_mul_i32 s{sT2}, s{sW}, {BLK}\ns_add_u32 s{sT2}, s{sT2}, {XSZ}\ns_lshl_b32 s{sT3}, s{sW}, 12")
    e(f"s_cmp_eq_u32 s{sTY}, 1\ns_cbranch_scc1 L_k1_ty1")
    for ty in range(2):
        tag = f"k1t{ty}"
        if ty == 1:
            e("L_k1_ty1:")
        k1_setup(e, ty)
        e("s_waitcnt lgkmcnt(0)")
        srd(e, SRD_X, 4, S * D * 2); srd(e, SRD_A, 6, D * 1920 * 2); srd(e, SRD_B, 12, D * F * 2)
        srd(e, SRD_WS, 20, WS_USED); srd(e, SRD_DBG, 18, 256)
        e(f"s_add_u32 s{SRD_KV}, s20, {KV_OFF}\ns_addc_u32 s{SRD_KV+1}, s21, 0\ns_mov_b32 s{SRD_KV+2}, {KV_SZ}\ns_mov_b32 s{SRD_KV+3}, 0x20000")
        stamp(e, cfg, 1)
        e("v_mov_b32 v8, 0\nv_mov_b32 v9, 0\nv_mov_b32 v10, 0\nv_mov_b32 v11, 0")
        if ty == 0:
            e(f"s_cmp_lg_u32 s{sRB}, 0\ns_cbranch_scc1 L_{tag}_noz")
            e(f"s_mul_i32 s3, s{sHG}, 6720\nv_lshlrev_b32 v2, 4, v0\nv_add_u32 v3, 4096, v2\nv_mov_b32 v4, {OOB}\nv_cmp_gt_u32 vcc, 164, v0\nv_cndmask_b32 v3, v4, v3, vcc")
            e(f"buffer_store_dwordx4 v[8:11], v2, s[{SRD_KV}:{SRD_KV+3}], s3 offen sc1\nbuffer_store_dwordx4 v[8:11], v3, s[{SRD_KV}:{SRD_KV+3}], s3 offen sc1")
            e(f"L_{tag}_noz:")
        for sg in range(2):
            e.ext(k1_dma_items(ty))
            e.ext(k1_advance())
        e.ext(k1_dma_items(ty)[:4])
        k1_read_addrs(e, ty)
        e(f"v_lshlrev_b32 v2, 2, v0\nds_write_b32 v2, v8 offset:{CS_L & 0xffff}" if CS_L < 65536 else
          f"v_lshlrev_b32 v2, 2, v0\nv_add_u32 v2, {CS_L}, v2\nds_write_b32 v2, v8")
        e(f"v_mov_b32 v{ONES}, 0x3f803f80\nv_mov_b32 v{ONES+1}, 0x3f803f80")
        for r in list(range(ACC, ACC + 112)) + list(range(CSA, CSA + 36)):
            e(f"v_mov_b32 v{r}, 0")
        e("s_waitcnt vmcnt(14) lgkmcnt(0)\ns_barrier")
        stamp(e, cfg, 2)
        if ty == 0:
            e(f"s_or_b32 s3, s{sRB}, s{sW}\ns_cmp_lg_u32 s3, 0\ns_cbranch_scc1 L_{tag}_nof")
            e(f"s_lshl_b32 s3, s{sHG}, 2\nv_mov_b32 v2, s3\nv_mov_b32 v3, 1\nbuffer_store_dword v3, v2, s[{SRD_DBG}:{SRD_DBG+3}], 0 offen sc1")
            e(f"L_{tag}_nof:")
        e.ext(k1_reads(ty, 0, 0))
        n0 = len(e.l)
        k1_loop(e, ty)
        for d in cfg.drop.split(","):
            if d.startswith("lp:"):
                e.l[n0:] = [x for x in e.l[n0:] if not x.startswith(d[3:])]
        stamp(e, cfg, 3)
        n0 = len(e.l)
        k1_epilogue(e, ty, cfg)
        for d in cfg.drop.split(","):
            if d.startswith("ep:"):
                e.l[n0:] = [x for x in e.l[n0:] if not x.startswith(d[3:])]
        stamp(e, cfg, 4)
        stamp_flush(e, cfg, 0, 5, sW)
        e("s_endpgm")
    e("L_k1_end:\ns_endpgm")
    return e.l


K2_KV = 256
K2_RED = K2_KV + 4 * 14336
K2_LDS = K2_RED + 4 * 20480
ACC2, OO, NN, KF, KW, TM = 16, 96, 176, 208, 220, 238
PQA, RING = 0, 80
DEPTH = 4


def kernel2(cfg):
    e = Em()
    sW2, sRB2, sCB, sH, sWp, sQ, sT0, sT1, sT2, sHM = 52, 53, 54, 56, 60, 61, 63, 64, 65, 66
    e("k2_kernel:")
    stamp(e, cfg, 0)
    e("s_cmp_ge_u32 s2, 256\ns_cbranch_scc1 L_k2_end")
    e("s_load_dwordx2 s[4:5], s[0:1], 0\ns_load_dwordx2 s[16:17], s[0:1], 48\ns_load_dwordx2 s[20:21], s[0:1], 64")
    e(f"v_and_b32 v1, 63, v0\nv_lshrrev_b32 v2, 6, v0\nv_readfirstlane_b32 s{sW2}, v2\nv_lshlrev_b32 v2, 4, v1")
    e(f"s_and_b32 s{sT0}, s2, 7\ns_lshr_b32 s{sT1}, s2, 3")
    e(f"s_lshr_b32 s{sT2}, s{sT0}, 1\ns_lshl_b32 s{sT2}, s{sT2}, 3\ns_and_b32 s{sRB2}, s{sT1}, 7\ns_add_u32 s{sRB2}, s{sRB2}, s{sT2}")
    e(f"s_and_b32 s{sT0}, s{sT0}, 1\ns_lshl_b32 s{sT0}, s{sT0}, 2\ns_lshr_b32 s{sCB}, s{sT1}, 3\ns_add_u32 s{sCB}, s{sCB}, s{sT0}")
    e(f"s_mul_i32 s{sT0}, s{sRB2}, {4*49152}\ns_mul_i32 s{sT1}, s{sW2}, {12*1024}\ns_add_u32 s{sH}, s{sT0}, s{sT1}")
    for r in range(1, 4):
        e(f"s_add_u32 s{sH+r}, s{sH}, {r*49152}")
    e(f"s_mul_i32 s{sT0}, s{sCB}, {340*1024}\ns_add_u32 s{sT0}, s{sT0}, {WP_OFF}\ns_mul_i32 s{sT1}, s{sW2}, {60*1024}\ns_add_u32 s{sWp}, s{sT0}, s{sT1}")
    e(f"s_mul_i32 s{sT1}, s{sW2}, {25*1024}\ns_add_u32 s62, s{sT0}, s{sT1}\ns_add_u32 s62, s62, {240*1024}")
    e(f"s_mul_i32 s{sT0}, s{sRB2}, {80*1024}\ns_mul_i32 s{sT1}, s{sW2}, {10*1024}\ns_add_u32 s{sQ}, s{sT0}, s{sT1}\ns_add_u32 s{sQ}, s{sQ}, {QP_OFF}")
    e(f"s_mov_b32 s{sHM}, 0\ns_mov_b32 s{sHM+1}, -1")
    e("s_waitcnt lgkmcnt(0)")
    srd(e, SRD_X, 4, S * D * 2); srd(e, SRD_A, 16, S * D * 2); srd(e, SRD_WS, 20, WS_USED)
    stamp(e, cfg, 1)
    WS = f"s[{SRD_WS}:{SRD_WS+3}]"
    vmq = []

    def vm(text, tag):
        e(text)
        vmq.append(tag)

    def wait_vm(tag):
        idx = max(i for i, t in enumerate(vmq) if t == tag)
        e(f"s_waitcnt vmcnt({min(63, len(vmq)-1-idx)})")

    seq = [("U", m) for m in range(8)] + [("V", u) for u in range(5)] + [("U", m) for m in range(8, 12)]

    def issue(n):
        kind, m = seq[n]
        rb = RING + 36 * (n % DEPTH)
        if kind == "U":
            for r in range(4):
                vm(f"buffer_load_dwordx4 {ar(rb+4*r,4)}, v2, {WS}, s{sH+r} offen offset:{1024*(m&3)}", n)
            if (m & 3) == 3:
                for r in range(4):
                    e(f"s_add_u32 s{sH+r}, s{sH+r}, 4096")
        sw = sWp if kind == "U" else 62
        for c in range(5):
            if c == 4:
                e(f"s_add_u32 s{sw}, s{sw}, 4096")
            vm(f"buffer_load_dwordx4 {ar(rb+16+4*c,4)}, v2, {WS}, s{sw} offen offset:{1024*(c&3)}", n)
        e(f"s_add_u32 s{sw}, s{sw}, 1024")

    issue(0)
    e(f"s_mul_i32 s{sT0}, s{sW2}, 13440\ns_add_u32 s{sT0}, s{sT0}, {KV_OFF}\ns_mul_i32 s{sT1}, s{sW2}, 14336\ns_add_u32 s{sT1}, s{sT1}, {K2_KV}")
    for i in range(14):
        if i % 4 == 0:
            e(f"s_add_u32 m0, s{sT1}, {1024*i}\ns_add_u32 s{sT2}, s{sT0}, {1024*i}")
        vm(f"buffer_load_dwordx4 v2, {WS}, s{sT2} offen offset:{1024*(i&3)} lds", "kv")
    for r in range(2):
        for t in range(10):
            if t % 4 == 0:
                e(f"s_add_u32 s{sT2}, s{sQ}, {r*40960+1024*t}")
            vm(f"buffer_load_dwordx4 {ar(PQA+40*r+4*t,4)}, v2, {WS}, s{sT2} offen offset:{1024*(t&3)}", "pq")
    issue(1)
    e("v_bfe_u32 v5, v1, 2, 3\nv_and_b32 v6, 3, v1\nv_lshl_add_u32 v7, v5, 2, v6\nv_subrev_u32 v8, 4, v7")
    e("v_cmp_gt_u32 vcc, 20, v7\nv_cndmask_b32 v7, 20, v7, vcc\nv_cmp_gt_u32 vcc, 20, v8\nv_cndmask_b32 v8, 20, v8, vcc")
    e(f"v_lshrrev_b32 v9, 5, v1\nv_lshlrev_b32 v9, 4, v9\nv_add_u32 v9, s{sT1}, v9")
    e(f"v_mul_u32_u24 v7, 80, v7\nv_add_u32 v3, v7, v9\nv_mul_u32_u24 v8, 80, v8\nv_add_u32 v4, v8, v9\nv_subrev_u32 v4, 16, v4")
    for r in range(ACC2, ACC2 + 80):
        e(f"v_mov_b32 v{r}, 0")
    for r in (KW, KW + 1, KW + 8, KW + 9, KW + 16, KW + 17):
        e(f"v_mov_b32 v{r}, 0")
    e(f"s_lshl_b32 s{sT0}, s{sRB2}, 6\ns_lshl_b32 s{sT2}, s{sW2}, 4\ns_add_u32 s{sT0}, s{sT0}, s{sT2}")
    e(f"v_and_b32 v5, 15, v1\nv_add_u32 v5, s{sT0}, v5\nv_mul_u32_u24 v5, 1280, v5\nv_lshrrev_b32 v6, 4, v1\nv_lshl_add_u32 v5, v6, 3, v5")
    e(f"s_mul_i32 s{sT0}, s{sCB}, 160\nv_add_u32 v10, s{sT0}, v5")
    issue(2)

    def head(hh):
        odd = hh & 1
        win = KW + 2 + 8 * odd
        av = 4 if odd else 3
        base = hh * 1680
        for j in range(3):
            e(f"ds_read_b128 {vr(KF+4*j,4)}, v{av} offset:{base+32*j}")
        e("s_waitcnt lgkmcnt(0)")
        hv = 0 if odd else 2
        for j in range(3):
            for q in range(2):
                e(f"v_cvt_pk_bf16_f32 v{win+2*j+q}, v{KF+4*j+2*q}, v{KF+4*j+2*q+1}")
        for q in range(2):
            r = win + 2 * hv + q
            e(f"v_cndmask_b32 v{r}, 0, v{r}, s[{sHM}:{sHM+1}]" if odd else f"v_cndmask_b32 v{r}, v{r}, 0, s[{sHM}:{sHM+1}]")
        ka = win if (hh & 3) < 2 else win - 2
        t0 = (20 * hh) >> 4
        for r in range(2):
            e(f"v_mfma_f32_32x32x16_bf16 {vr(NN+16*r,16)}, {vr(ka,4)}, {ar(PQA+40*r+4*t0,4)}, 0")
        for r in range(2):
            e(f"v_mfma_f32_32x32x16_bf16 {vr(NN+16*r,16)}, {vr(ka+4,4)}, {ar(PQA+40*r+4*t0+4,4)}, {vr(NN+16*r,16)}")

    def head_fin(hh):
        odd = hh & 1
        for r in range(2):
            n = NN + 16 * r
            e(f"v_add_f32 v{TM+2*r}, {f2u(1e-6)}, v{n+12}")
        for r in range(2):
            e(f"v_rcp_f32 v{TM+2*r}, v{TM+2*r}")
        for r in range(2):
            e(f"v_mov_b32 v{TM+2*r+1}, v{TM+2*r}")
        for r in range(2):
            n = NN + 16 * r
            for p in range(6):
                e(f"v_pk_mul_f32 {vr(n+2*p,2)}, {vr(n+2*p,2)}, {vr(TM+2*r,2)}")
        for r in range(2):
            n = NN + 16 * r
            ob = OO + 40 * r + 10 * (hh >> 1) + (4 if odd else 0)
            for p in range(6):
                dst = ob + p if not (odd and p < 2) else TM + 4 + p
                e(f"v_cvt_pk_bf16_f32 v{dst}, v{n+2*p}, v{n+2*p+1}")
            if odd:
                for p in range(2):
                    e(f"v_cndmask_b32 v{ob+p}, v{ob+p}, v{TM+4+p}, s[{sHM}:{sHM+1}]")

    def mf(n):
        kind, m = seq[n]
        rb = RING + 36 * (n % DEPTH)
        for r in range(4):
            for c in range(5):
                hb = ar(rb + 4 * r, 4) if kind == "U" else vr(OO + 40 * (r >> 1) + 8 * m + 4 * (r & 1), 4)
                a = ACC2 + 4 * (5 * r + c)
                e(f"v_mfma_f32_16x16x32_bf16 {vr(a,4)}, {ar(rb+16+4*c,4)}, {hb}, {vr(a,4)}")

    for n in range(len(seq)):
        if n == 0:
            wait_vm("pq")
            stamp(e, cfg, 2)
        if n + 3 < len(seq):
            issue(n + 3)
        if n == len(seq) - 3:
            for c in range(5):
                vm(f"buffer_load_dwordx2 {vr(TM+8+2*c,2)}, v10, s[{SRD_X}:{SRD_X+3}], 0 offen offset:{32*c}", "x")
        if n < 8:
            head(n)
        wait_vm(n)
        mf(n)
        if n < 8:
            head_fin(n)
        if n == 7:
            for r in range(2):
                for u in range(5):
                    for i in range(4):
                        e(f"v_permlane16_swap_b32 v{OO+40*r+8*u+i}, v{OO+40*r+8*u+4+i}")
    stamp(e, cfg, 3)
    e(f"s_mul_i32 s{sT0}, s{sW2}, 20480\ns_add_u32 s{sT0}, s{sT0}, {K2_RED}\nv_add_u32 v3, s{sT0}, v2")
    e(f"s_mul_i32 s{sT0}, s{sW2}, 5120\ns_add_u32 s{sT0}, s{sT0}, {K2_RED}\nv_add_u32 v4, s{sT0}, v2\nv_add_u32 v5, 40960, v4")
    for k in range(20):
        e(f"ds_write_b128 v3, {vr(ACC2+4*k,4)} offset:{1024*k}")
        if k == 11:
            e("s_waitcnt lgkmcnt(6)")
    e("s_waitcnt lgkmcnt(0)\ns_barrier")
    for c in range(5):
        for w in range(4):
            e(f"ds_read_b128 {vr(OO+16*c+4*w,4)}, v{4+(w>>1)} offset:{20480*(w&1)+1024*c}")
        if c >= 2:
            e("s_waitcnt lgkmcnt(8)")
    e("s_waitcnt vmcnt(0)")
    for c in range(5):
        if c == 3:
            e("s_waitcnt lgkmcnt(0)")
        b = OO + 16 * c
        xr = TM + 8 + 2 * c
        e(f"v_lshlrev_b32 v12, 16, v{xr}\nv_and_b32 v13, 0xffff0000, v{xr}\nv_lshlrev_b32 v14, 16, v{xr+1}\nv_and_b32 v15, 0xffff0000, v{xr+1}")
        for h in range(2):
            e(f"v_pk_add_f32 {vr(b+2*h,2)}, {vr(b+2*h,2)}, {vr(b+4+2*h,2)}")
            e(f"v_pk_add_f32 {vr(b+8+2*h,2)}, {vr(b+8+2*h,2)}, {vr(b+12+2*h,2)}")
        for h in range(2):
            e(f"v_pk_add_f32 {vr(b+2*h,2)}, {vr(b+2*h,2)}, {vr(b+8+2*h,2)}")
        for h in range(2):
            e(f"v_pk_add_f32 {vr(b+2*h,2)}, {vr(b+2*h,2)}, {vr(12+2*h,2)}")
        e(f"v_cvt_pk_bf16_f32 v{b+4}, v{b}, v{b+1}\nv_cvt_pk_bf16_f32 v{b+5}, v{b+2}, v{b+3}")
        e(f"buffer_store_dwordx2 {vr(b+4,2)}, v10, s[{SRD_A}:{SRD_A+3}], 0 offen offset:{32*c} {cfg.out_flags}")
    stamp(e, cfg, 4)
    stamp_flush(e, cfg, 1, 5, sW2)
    e("L_k2_end:\ns_endpgm")
    return e.l


def desc(name, nv, acc):
    return (f".p2align 6\n.amdhsa_kernel {name}\n  .amdhsa_next_free_vgpr {nv}\n  .amdhsa_next_free_sgpr 102\n"
            f"  .amdhsa_accum_offset {acc}\n  .amdhsa_group_segment_fixed_size 0\n  .amdhsa_kernarg_size 72\n"
            "  .amdhsa_user_sgpr_count 2\n  .amdhsa_user_sgpr_kernarg_segment_ptr 1\n  .amdhsa_system_sgpr_workgroup_id_x 1\n"
            "  .amdhsa_float_denorm_mode_32 3\n.end_amdhsa_kernel")


def build(cfg, verbose=False):
    out = [f"; @launch kernel=k1_kernel grid=(256,1,1) block=(256,1,1) lds={K1_LDS}",
           f"; @launch kernel=k2_kernel grid=(256,1,1) block=(256,1,1) lds={K2_LDS}",
           '.amdgcn_target "amdgcn-amd-amdhsa--gfx950"', ".text"]
    for nm, fn in (("k1_kernel", kernel1), ("k2_kernel", kernel2)):
        log = []
        body = pad_hazards(fn(cfg), log)
        errs = check_waits(body, nm)
        for x in errs:
            print("CHECK", x, file=sys.stderr)
        if verbose:
            print(nm, "instructions:", len(body), "pads:", len(log), file=sys.stderr)
            for x in log:
                print("   pad", x, file=sys.stderr)
        out += [f".globl {nm}", ".p2align 8", f".type {nm},@function"]
        out += [x if x.endswith(":") else "    " + x for x in body]
    out.append('.section .rodata,"a"')
    out.append(desc("k1_kernel", 256, 256))
    out.append(desc("k2_kernel", 480, 256))
    return "\n".join(out) + "\n"


if __name__ == "__main__":
    cfg = Cfg()
    path = sys.argv[1]
    for kv in sys.argv[2:]:
        if kv == "-v":
            continue
        k, v = kv.split("=")
        setattr(cfg, k, v if k.endswith("flags") or k == "drop" else int(v))
    open(path, "w").write(build(cfg, "-v" in sys.argv))
```

```python
import re

TRANS = ("v_exp_f32", "v_log_f32", "v_rcp_f32", "v_rsq_f32", "v_sqrt_f32", "v_sin_f32", "v_cos_f32")
RX_RANGE = re.compile(r"^-?\|?(?:abs\()?([vas])\[(\d+):(\d+)\]\)?\|?$")
RX_ONE = re.compile(r"^-?\|?(?:abs\()?([vas])(\d+)\)?\|?$")


def regs_of(tok):
    tok = tok.strip()
    m = RX_RANGE.match(tok)
    if m:
        return [f"{m.group(1)}{i}" for i in range(int(m.group(2)), int(m.group(3)) + 1)]
    m = RX_ONE.match(tok)
    if m:
        return [f"{m.group(1)}{m.group(2)}"]
    if tok == "vcc":
        return ["vcc"]
    if tok in ("vcc_lo", "vcc_hi"):
        return ["vcc"]
    if tok in ("exec", "exec_lo", "exec_hi"):
        return ["exec"]
    if tok == "m0":
        return ["m0"]
    return []


def mfma_passes(mn):
    if "4x4x4" in mn:
        return 2
    if "16x16x32" in mn or "16x16x16" in mn:
        return 4
    if "32x32x16" in mn or "32x32x8" in mn:
        return 8
    raise ValueError(mn)


class Ins:
    __slots__ = ("text", "mn", "kind", "wr", "rd", "a", "b", "c", "states", "label", "target", "mods", "passes",
                 "vm", "lgkm", "smem", "wait_vm", "wait_lgkm", "wide_store", "data")

    def __init__(self, text):
        self.text = text
        self.label = None
        self.target = None
        self.wr, self.rd = [], []
        self.a, self.b, self.c = [], [], []
        self.states = 1
        self.kind = "other"
        self.passes = 0
        self.vm = self.lgkm = self.smem = False
        self.wait_vm = self.wait_lgkm = None
        self.wide_store = False
        self.data = []
        t = text.split(";")[0].strip()
        self.mn = ""
        self.mods = ""
        if not t:
            self.kind = "none"
            self.states = 0
            return
        if t.endswith(":"):
            self.kind = "label"
            self.label = t[:-1]
            self.states = 0
            return
        if t.startswith("."):
            self.kind = "none"
            self.states = 0
            return
        parts = t.split(None, 1)
        mn = self.mn = parts[0]
        rest = parts[1] if len(parts) > 1 else ""
        ops = [o.strip() for o in re.split(r",(?![^\[]*\])", rest)] if rest else []
        if ops:
            last = ops[-1].split()
            if last:
                ops[-1] = last[0]
                self.mods = " ".join(last[1:])
        R = [regs_of(o) for o in ops]
        flat = lambda xs: [r for x in xs for r in x]
        if mn.startswith("v_mfma"):
            self.kind = "mfma"
            self.passes = mfma_passes(mn)
            self.wr, self.a, self.b, self.c = R[0], R[1], R[2], R[3]
            self.rd = self.a + self.b + self.c
        elif mn.startswith("v_"):
            self.kind = "valu"
            base = mn.replace("_e32", "").replace("_e64", "").replace("_dpp", "").replace("_sdwa", "")
            if base.startswith("v_permlane") and "swap" in base:
                self.wr = R[0] + R[1]
                self.rd = R[0] + R[1]
            elif base in ("v_add_co_u32", "v_sub_co_u32", "v_addc_co_u32", "v_subb_co_u32", "v_mad_u64_u32"):
                self.wr = R[0] + R[1]
                self.rd = flat(R[2:])
            else:
                self.wr = R[0]
                self.rd = flat(R[1:])
                if base in ("v_fmac_f32", "v_dot2c_f32_bf16", "v_writelane_b32") or "dpp" in mn or "row_" in self.mods or "quad_perm" in self.mods:
                    self.rd = self.rd + R[0]
            if base == "v_nop":
                self.wr, self.rd = [], []
        elif mn.startswith("ds_"):
            self.kind = "ds"
            self.lgkm = True
            if mn.startswith("ds_read") or "permute" in mn or "swizzle" in mn:
                self.wr = R[0]
                self.rd = flat(R[1:])
            else:
                self.rd = flat(R)
        elif mn.startswith("buffer_") or mn.startswith("global_"):
            self.kind = "vmem"
            if mn in ("buffer_inv", "buffer_wbl2"):
                self.vm = True
                return
            self.vm = True
            islds = " lds" in (" " + self.mods) or "load_lds" in mn
            if "load" in mn and not islds:
                self.wr = R[0]
                self.rd = flat(R[1:])
            elif "load" in mn:
                self.rd = flat(R) + ["m0"]
            else:
                self.rd = flat(R)
                self.data = R[0] if mn.startswith("buffer_") else R[1]
                if "atomic" in mn and "sc0" in self.mods:
                    self.wr = list(self.data)
                if mn.endswith("x3") or mn.endswith("x4"):
                    self.wide_store = True
        elif mn.startswith("s_"):
            self.kind = "salu"
            if mn == "s_nop":
                self.states = int(ops[0], 0) + 1
                self.kind = "nop"
            elif mn == "s_waitcnt":
                self.kind = "wait"
                m = re.search(r"vmcnt\((\d+)\)", rest)
                self.wait_vm = int(m.group(1)) if m else None
                m = re.search(r"lgkmcnt\((\d+)\)", rest)
                self.wait_lgkm = int(m.group(1)) if m else None
            elif mn.startswith("s_cbranch") or mn == "s_branch":
                self.kind = "branch"
                self.target = ops[0]
            elif mn in ("s_barrier", "s_endpgm", "s_setprio", "s_sleep"):
                self.kind = "misc"
            elif mn.startswith("s_load") or mn in ("s_memtime", "s_memrealtime") or mn.startswith("s_atomic"):
                self.kind = "smem"
                self.lgkm = True
                self.smem = True
                self.wr = R[0]
                self.rd = flat(R[1:])
            elif mn.startswith("s_cmp") or mn.startswith("s_bitcmp"):
                self.rd = flat(R)
            elif "saveexec" in mn:
                self.wr = R[0] + ["exec"]
                self.rd = flat(R[1:]) + ["exec"]
            else:
                self.wr = R[0]
                self.rd = flat(R[1:])
        else:
            raise ValueError("unknown instruction: " + text)


def is_trans(i):
    return i.kind == "valu" and any(i.mn.startswith(t) for t in TRANS)


def need_states(p, c):
    n = 0
    pw = set(p.wr)
    if p.kind == "valu":
        vw = {r for r in pw if r[0] in "va" and r != "vcc"}
        sw = pw - vw
        if c.kind == "mfma" and vw & set(c.rd):
            n = max(n, 2)
        if c.kind == "valu":
            if is_trans(p) and vw & set(c.rd):
                n = max(n, 1)
            if ("sdwa" in p.mn or ("op_sel" in p.mods and not p.mn.startswith("v_pk_"))) and vw & (set(c.rd) | set(c.wr)):
                n = max(n, 1)
            if c.mn.startswith(("v_readlane", "v_readfirstlane")) and vw & set(c.rd):
                n = max(n, 1)
            if c.mn.startswith("v_permlane") and vw & set(c.rd):
                n = max(n, 2)
            if ("dpp" in c.mn or "row_" in c.mods or "quad_perm" in c.mods) and vw & set(c.rd):
                n = max(n, 2)
            if sw & set(c.rd):
                n = max(n, 4 if c.mn.startswith(("v_readlane", "v_writelane")) else 2)
            if "exec" in sw:
                n = max(n, 5)
        if c.kind == "vmem" and sw & set(c.rd):
            n = max(n, 5)
        if c.kind == "mfma" and "exec" in sw:
            n = max(n, 4)
    if p.kind == "mfma":
        k = {2: 0, 4: 1, 8: 2, 16: 3}[p.passes]
        if c.kind == "mfma":
            if pw & set(c.c):
                if p.wr == c.c and p.passes == c.passes:
                    n = max(n, (2, 0, 0, 0)[k])
                else:
                    n = max(n, (4, 6, 10, 18)[k])
            if pw & (set(c.a) | set(c.b)):
                n = max(n, (5, 8, 12, 20)[k])
            if pw & set(c.wr) and not (pw & set(c.c)):
                n = max(n, (4, 6, 10, 18)[k])
        elif c.kind in ("valu", "vmem", "ds"):
            if pw & (set(c.rd) | set(c.wr)):
                n = max(n, (5, 8, 12, 20)[k])
        if c.kind in ("valu",) and set(p.c) & set(c.wr):
            n = max(n, (1, 3, 7, 15)[k])
    if p.kind == "vmem" and p.wide_store and set(p.data) & set(c.wr):
        n = max(n, 2)
    if p.kind == "salu" and "m0" in pw and c.kind == "vmem" and "m0" in c.rd:
        n = max(n, 1)
    return n


WINDOW = 22


def _deficit(hist, seq):
    worst = 0
    ahead = 0
    for c in seq:
        if ahead >= WINDOW:
            break
        if c.states and c.kind not in ("nop",):
            dist = ahead
            for p in reversed(hist):
                if dist >= WINDOW:
                    break
                if p.states:
                    nd = need_states(p, c)
                    if nd > dist:
                        worst = max(worst, nd - dist)
                dist += p.states
        ahead += c.states
        if c.kind == "branch" and c.mn == "s_branch":
            break
        if c.mn == "s_endpgm":
            break
    return worst


def _nops(n):
    out = []
    while n > 0:
        k = min(n, 16)
        out.append(Ins(f"s_nop {k-1}"))
        n -= k
    return out


def pad_hazards(lines, log=None):
    ins = [Ins(l) for l in lines]
    out = []
    for c in ins:
        if c.states and c.kind != "nop":
            d = _deficit(out[-64:], [c])
            if d:
                if log is not None:
                    log.append((d, c.text))
                out.extend(_nops(d))
        out.append(c)
    changed = True
    while changed:
        changed = False
        labels = {x.label: i for i, x in enumerate(out) if x.label}
        for i, x in enumerate(out):
            if x.kind == "branch" and x.target in labels:
                j = labels[x.target]
                d = _deficit(out[max(0, i - 64):i + 1], out[j:j + 64])
                if d:
                    if log is not None:
                        log.append((d, "branch " + x.text))
                    out[i:i] = _nops(d)
                    changed = True
                    break
    return [x.text for x in out]


def check_waits(lines, name=""):
    ins = [Ins(l) for l in lines]
    labels = {x.label: i for i, x in enumerate(ins) if x.label}
    vm, lg = [], []
    taken = set()
    errs = []
    i = 0
    steps = 0
    while i < len(ins) and steps < 400000:
        steps += 1
        x = ins[i]
        if x.kind == "wait":
            if x.wait_vm is not None and len(vm) > x.wait_vm:
                vm = vm[len(vm) - x.wait_vm:] if x.wait_vm else []
            if x.wait_lgkm is not None:
                if x.wait_lgkm == 0:
                    lg = []
                elif not any(s for _, s in lg) and len(lg) > x.wait_lgkm:
                    lg = lg[len(lg) - x.wait_lgkm:]
        elif x.states:
            touch = set(x.rd) | set(x.wr)
            for w in vm:
                if touch & w:
                    errs.append(f"{name}: vm RAW/WAW at line {i}: {x.text}")
                    break
            for w, _ in lg:
                if touch & w:
                    errs.append(f"{name}: lgkm RAW/WAW at line {i}: {x.text}")
                    break
            if x.vm:
                vm.append(set(x.wr))
                if len(vm) > 63:
                    errs.append(f"{name}: more than 63 vm ops outstanding at line {i}: {x.text}")
            if x.lgkm:
                lg.append((set(x.wr), x.smem))
                pass
        if x.kind == "branch" and x.target in labels:
            j = labels[x.target]
            if x.mn == "s_branch":
                if j > i or i not in taken:
                    taken.add(i)
                    i = j
                    continue
            elif j <= i and i not in taken:
                taken.add(i)
                i = j
                continue
        if x.mn == "s_endpgm":
            vm, lg = [], []
        i += 1
    return errs


class Em:
    def __init__(self):
        self.l = []

    def __call__(self, s):
        for t in s.split("\n"):
            t = t.strip()
            if t:
                self.l.append(t)

    def ext(self, xs):
        for x in xs:
            self(x)


def vr(base, n=1, k="v"):
    return f"{k}{base}" if n == 1 else f"{k}[{base}:{base+n-1}]"


def ar(base, n=1):
    return vr(base, n, "a")


def sr(base, n=1):
    return vr(base, n, "s")


def interleave(main, fill, per_gap, start=0):
    out = []
    f = list(fill)
    for i, m in enumerate(main):
        out.append(m)
        if i >= start:
            n = per_gap[i] if isinstance(per_gap, (list, tuple)) else per_gap
            for _ in range(n):
                if f:
                    out.append(f.pop(0))
    out.extend(f)
    return out


def lgkm_waits(body, cyclic, cap=13):
    q = []
    res = []
    for pas in range(2 if cyclic else 1):
        res = []
        for t in body:
            x = Ins(t)
            if x.kind == "wait" and x.wait_lgkm is not None:
                q = q[len(q) - x.wait_lgkm:] if x.wait_lgkm and len(q) > x.wait_lgkm else ([] if x.wait_lgkm == 0 else q)
            if x.states and x.kind != "wait":
                touch = set(x.rd) | set(x.wr)
                idx = max((i for i, w in enumerate(q) if w & touch), default=-1)
                n = None
                if idx >= 0:
                    n = min(cap, len(q) - 1 - idx)
                elif x.lgkm and len(q) >= 15:
                    n = cap
                if n is not None:
                    res.append(f"s_waitcnt lgkmcnt({n})")
                    q = q[len(q) - n:] if n else []
                if x.lgkm:
                    q.append(set(x.wr))
            res.append(t)
    return res


class VmQ:
    def __init__(self, e):
        self.e = e
        self.q = []
        self.done = 0

    def op(self, text, tag=None):
        if len(self.q) - self.done >= 60:
            self.e("s_waitcnt vmcnt(48)")
            self.done = len(self.q) - 48
        self.e(text)
        self.q.append(tag)

    def count(self, tag):
        idx = max(i for i, t in enumerate(self.q) if t == tag)
        return len(self.q) - 1 - idx

    def wait(self, tag, extra=""):
        n = self.count(tag)
        if len(self.q) - n > self.done or extra:
            self.e(f"s_waitcnt vmcnt({min(n, 63)}) {extra}".strip())
            self.done = max(self.done, len(self.q) - n)

    def drain(self, extra=""):
        self.e(f"s_waitcnt vmcnt(0) {extra}".strip())
        self.done = len(self.q)


def sprinkle(stream, extra, every, start=0):
    out = []
    k = 0
    for i, x in enumerate(stream):
        out.append(x)
        if i >= start and (i - start) % every == every - 1 and k < len(extra):
            out.append(extra[k])
            k += 1
    return out, extra[k:]
```

```python
S, D, F, H, DH = 2048, 640, 1536, 32, 20
HP_OFF = 0
HP_SZ = 128 * 48 * 1024
OP_OFF = HP_OFF + HP_SZ
OP_SZ = 128 * 20 * 1024
WP_OFF = OP_OFF + OP_SZ
WP_SZ = 8 * 68 * 5 * 1024
KV_OFF = WP_OFF + WP_SZ
KV_SZ = 32 * 1680
CS_OFF = KV_OFF + 65536
RS_OFF = CS_OFF + 65536
FE_OFF = RS_OFF + 16384
FH_OFF = FE_OFF + 1024
FK_OFF = FH_OFF + 2048
FO_OFF = FK_OFF + 1024
EP_OFF = FO_OFF + 2048 + 2048
ST_OFF = EP_OFF + 4096
WS_USED = ST_OFF + (1 << 17)
```

```python
import sys, struct
from asmlib import *
from layout2 import *

NAME = "parallel_sum__linear_attn_block__dense_activation_silu__prompt_kernel"
LOG2E = 0x3FB8AA3B
OOB = 0x40000000


def f2u(x):
    return struct.unpack("<I", struct.pack("<f", x))[0]


class Cfg:
    stamps = 0
    pfcode = 1
    hfirst = 0
    out_flags = ""
    drop = ""
    b2_every = 14
    spin = 0x40000


STG, XSZ, BLK = 45056, 16384, 7168
SCR_L = 3 * STG
CS_L = SCR_L + 20480
LDS_SZ = CS_L + 1024
RP_L = 2 * STG + XSZ
PK_L, V_L = 0, 25600
WO_L = 51200

SRD_X, SRD_A, SRD_B, SRD_WS, SRD_J, SRD_O = 24, 28, 32, 36, 40, 44
sW, sR, sC, sRB, sHG, sTY, sNON, sIT, sCUR, sX, sA, sB, sDL, sDLT, sXW, sWW, sHS, sNX = range(48, 66)
T0, T1, T2, T3, T4, T5 = range(66, 72)
sHM, sOK = 72, 74
WS = f"s[{SRD_WS}:{SRD_WS+3}]"

ACC, XF, WF, VX, VW, AX, AA, AB = 16, (128, 144), 160, 188, 192, 199, 201, 203
VL16, FL, RSV, CSV4, VRS, VCS = 254, 208, 212, 220, 224, 225
VEP = 226


def srd(e, d, base, size):
    e(f"s_mov_b32 s{d}, s{base}\ns_mov_b32 s{d+1}, s{base+1}\ns_mov_b32 s{d+2}, {size}\ns_mov_b32 s{d+3}, 0x20000")


def stamp(e, cfg, i):
    if cfg.stamps:
        e(f"s_memrealtime s[{76+2*i}:{77+2*i}]")


def acc(rho, tau):
    return ACC + 4 * (7 * rho + tau)


def dma_x():
    return [f"s_add_u32 m0, s{sDL}, s{sXW}"] + \
           [f"buffer_load_dwordx4 v{VX+i}, s[{SRD_X}:{SRD_X+3}], s{sX} offen offset:{1024*i} lds" for i in range(4)]


def dma_w(ty):
    nA = 5 if ty == 0 else 3
    it = []
    prev = 0
    for a, b in ([(0, 4), (4, 5), (5, 7)] if ty == 0 else [(0, 3), (3, 7)]):
        it.append(f"s_add_u32 m0, s{sDL}, s{sWW}" if a == 0 else f"s_add_u32 m0, m0, {1024*(a-prev)}")
        prev = a
        for i in range(a, b):
            s, so = (SRD_A, sA) if i < nA else (SRD_B, sB)
            it.append(f"buffer_load_dwordx4 v{VW+i}, s[{s}:{s+3}], s{so} offen offset:{1024*(i-a)} lds")
    return it


def advance_k():
    return [f"s_add_u32 s{sX}, s{sX}, 128", f"s_add_u32 s{sA}, s{sA}, {64*3840}", f"s_add_u32 s{sB}, s{sB}, {64*3072}"]


def w_offsets(e, ty):
    nA = 5 if ty == 0 else 3
    cpr, magic = (20, 3277) if ty == 0 else (12, 5462)

    def rowperm():
        e("v_bfe_u32 v5, v3, 2, 1\nv_and_b32 v6, 3, v3\nv_lshl_add_u32 v6, v5, 3, v6\nv_bfe_u32 v7, v3, 3, 1\nv_lshl_add_u32 v6, v7, 2, v6")
        e(f"v_add_u32 v6, s{T0}, v6")
    for i in range(nA):
        e(f"v_add_u32 v2, {64*i}, v1\nv_mul_u32_u24 v3, {magic}, v2\nv_lshrrev_b32 v3, 16, v3\nv_mul_u32_u24 v4, {cpr}, v3\nv_sub_u32 v4, v2, v4")
        rowperm()
        e("v_lshlrev_b32 v5, 1, v5\nv_xor_b32 v4, v4, v5\nv_mul_u32_u24 v6, 3840, v6")
        imm = 1024 * (i if i < 4 else i - 4)
        if ty == 0:
            e("v_mul_u32_u24 v7, 52, v4\nv_lshrrev_b32 v7, 8, v7\nv_and_b32 v8, 1, v7\nv_mul_u32_u24 v8, 1200, v8\nv_lshrrev_b32 v7, 1, v7\nv_mul_u32_u24 v7, 80, v7")
            e(f"v_lshl_add_u32 v6, v4, 4, v6\nv_add_u32 v6, v6, v8\nv_sub_u32 v6, v6, v7\nv_add_u32 v6, s{T1}, v6\nv_add_u32 v{VW+i}, {1280-imm & 0xffffffff}, v6")
        else:
            e(f"v_cmp_lt_u32 vcc, 5, v4\nv_lshl_add_u32 v6, v4, 4, v6\nv_add_u32 v6, s{T1}, v6\nv_cndmask_b32 v7, 0, 16, vcc\nv_sub_u32 v6, v6, v7")
            e(f"v_cmp_eq_u32 vcc, 5, v4\nv_cmp_eq_u32 s[{sOK}:{sOK+1}], 11, v4\nv_subrev_u32 v6, {imm}, v6\ns_or_b64 vcc, vcc, s[{sOK}:{sOK+1}]\nv_mov_b32 v7, {OOB}\nv_cndmask_b32 v{VW+i}, v6, v7, vcc")
    lg = 3 if ty == 0 else 4
    for i in range(7 - nA):
        e(f"v_add_u32 v2, {64*i}, v1\nv_lshrrev_b32 v3, {lg}, v2\nv_and_b32 v4, {(1<<lg)-1}, v2")
        rowperm()
        e("v_bfe_u32 v5, v3, 1, 2" if ty == 0 else "v_and_b32 v5, 7, v3")
        e(f"v_lshlrev_b32 v5, 1, v5\nv_xor_b32 v4, v4, v5\nv_mul_u32_u24 v6, 3072, v6\nv_lshl_add_u32 v6, v4, 4, v6\nv_add_u32 v6, s{sHS}, v6")
        e(f"v_subrev_u32 v{VW+nA+i}, {1024*i}, v6")


def read_addrs(ty):
    pA, pB = (320, 128) if ty == 0 else (192, 256)
    nT, nB = (5, 2) if ty == 0 else (3, 4)
    o = []
    a = lambda s: o.extend(s.split("\n"))
    a("v_bfe_u32 v2, v1, 4, 1\nv_bfe_u32 v3, v1, 2, 2\nv_lshl_add_u32 v3, v2, 2, v3")
    a(f"v_lshrrev_b32 v4, 5, v1\nv_mul_u32_u24 v4, {BLK}, v4\nv_and_b32 v5, 3, v1\nv_lshl_add_u32 v4, v5, 3, v4\nv_add_u32 v4, {XSZ}, v4")
    a(f"v_mul_u32_u24 v5, {pA}, v3\nv_add_u32 v5, v5, v4\ns_mul_i32 s{T2}, s{sC}, {nT}\ns_add_u32 s{T3}, s{T2}, 1")
    a(f"v_xor_b32 v6, s{T2}, v2\nv_lshl_add_u32 v{AA}, v6, 5, v5\nv_xor_b32 v6, s{T3}, v2\nv_lshl_add_u32 v{AA+1}, v6, 5, v5")
    a(f"v_mul_u32_u24 v5, {pB}, v3\nv_add_u32 v5, v5, v4\nv_add_u32 v5, {16*pA}, v5\ns_mul_i32 s{T2}, s{sC}, {nB}")
    a("v_lshrrev_b32 v6, 1, v3" if ty == 0 else "v_mov_b32 v6, v3")
    a(f"v_xor_b32 v6, s{T2}, v6")
    for k in range(nB):
        a(f"v_xor_b32 v7, {k}, v6\nv_lshl_add_u32 v{AB+k}, v7, 5, v5")
    a(f"v_and_b32 v2, 15, v1\nv_bfe_u32 v3, v1, 1, 3\nv_lshrrev_b32 v4, 4, v1\nv_xor_b32 v3, v3, v4\ns_lshl_b32 s{T2}, s{sR}, 13\nv_lshlrev_b32 v5, 7, v2\nv_add_u32 v5, s{T2}, v5")
    a(f"v_lshl_add_u32 v{AX}, v3, 4, v5\nv_xor_b32 v3, 4, v3\nv_lshl_add_u32 v{AX+1}, v3, 4, v5")
    a(f"s_lshl_b32 s{T2}, s{sRB}, 7\ns_lshl_b32 s{T3}, s{sR}, 6\ns_add_u32 s{T2}, s{T2}, s{T3}\nv_add_u32 v2, s{T2}, v2\nv_lshlrev_b32 v2, 3, v2\nv_add_u32 v{VRS}, {RS_OFF}, v2")
    a(f"v_cmp_lt_u32 vcc, 111, v0\ns_mul_i32 s{T2}, s{sHG}, 80\ns_lshr_b32 s{T3}, s{sHS}, 1\nv_cndmask_b32 v2, 0, 1, vcc\nv_mul_u32_u24 v3, 112, v2\nv_sub_u32 v3, v0, v3")
    if ty == 0:
        a(f"v_cmp_gt_u32 vcc, 40, v3\nv_mov_b32 v4, 1240\nv_mov_b32 v5, 640\nv_cndmask_b32 v4, v4, v5, vcc\nv_mul_u32_u24 v5, 40, v2\nv_add3_u32 v4, v4, v5, s{T2}")
        a(f"v_cmp_gt_u32 vcc, 80, v3\nv_lshlrev_b32 v5, 5, v2\nv_add_u32 v5, s{T3}, v5\nv_add_u32 v5, 1840, v5")
    else:
        a(f"v_mul_u32_u24 v4, 40, v2\nv_add_u32 v4, s{T2}, v4")
        a(f"v_cmp_gt_u32 vcc, 48, v3\nv_lshlrev_b32 v5, 6, v2\nv_add_u32 v5, s{T3}, v5\nv_add_u32 v5, 1872, v5")
    a(f"v_cndmask_b32 v4, v5, v4, vcc\nv_add_u32 v4, v4, v3\nv_lshlrev_b32 v4, 4, v4\nv_add_u32 v{VCS}, {CS_OFF}, v4")
    return o


def w_reads(ty, t, tau):
    pA, pB = (320, 128) if ty == 0 else (192, 256)
    nT = 5 if ty == 0 else 3
    w = WF + 4 * tau
    if tau < nT:
        r, o, p = AA + (tau & 1), 2 * BLK * t + 64 * (tau >> 1), pA
    else:
        r, o, p = AB + tau - nT, 2 * BLK * t, pB
    return [f"ds_read_b64_tr_b16 {vr(w,2)}, v{r} offset:{o}", f"ds_read_b64_tr_b16 {vr(w+2,2)}, v{r} offset:{o+8*p}"]


def x_reads(t):
    return [f"ds_read_b128 {vr(XF[t]+4*rho,4)}, v{AX+t} offset:{2048*rho}" for rho in range(4)]


def stage_body(ty, tail, tag):
    nB = 2 if ty == 0 else 4
    fill = [[] for _ in range(56)]
    ring = [f"s_mov_b32 s{sDL}, s{sCUR}", f"s_add_u32 s{sCUR}, s{sCUR}, {STG}", f"s_cmp_eq_u32 s{sCUR}, {3*STG}",
            f"s_cselect_b32 s{sCUR}, 0, s{sCUR}", f"s_sub_u32 s{sDLT}, s{sCUR}, s{sDL}"]
    upd = [f"v_add_u32 v{r}, s{sDLT}, v{r}" for r in [AA, AA + 1] + [AB + k for k in range(nB)] + [AX]]
    for tau in range(7):
        fill[4 * tau + 3] += w_reads(ty, 1, tau)
    for k, x in enumerate(x_reads(1)):
        fill[4 * (k + 1) + 1].append(x)
    if not tail:
        gaps = [0, 2, 4, 6, 8, 10, 12, 14, 16, 18, 20]
        items = dma_w(ty)
        gi = 0
        for x in items:
            fill[gaps[gi]].append(x)
            gi += 1
        fill[22] += advance_k()[:2]
        fill[24] += advance_k()[2:] + ring[:1]
    else:
        fill[24] += ring[:1]
    fill[25] += ring[1:3]
    fill[26] += ring[3:5]
    for k, x in enumerate(upd):
        fill[28 + k].append(x)
    fill[28].append(f"s_add_u32 s{sIT}, s{sIT}, 1")
    bar = []
    if not tail:
        fill[30] += [f"s_cmp_eq_u32 s{sIT}, 8", f"s_cselect_b32 s{SRD_X+2}, 0, s{sNX}"]
        bar = [f"s_cmp_eq_u32 s{sIT}, 1", f"s_cbranch_scc1 L_{tag}_first", "s_waitcnt vmcnt(11) lgkmcnt(0)", f"L_{tag}_back:", "s_barrier",
               f"s_cmp_eq_u32 s{sIT}, s{T5}", f"s_cbranch_scc1 L_{tag}_eflag", f"L_{tag}_back2:"]
    else:
        bar = ["s_waitcnt vmcnt(0) lgkmcnt(0)", "s_barrier"]
    fill[35] += bar + w_reads(ty, 0, 0)
    fill[36] += w_reads(ty, 0, 1)
    for tau in range(2, 7):
        fill[28 + 4 * tau + 3] += w_reads(ty, 0, tau)
    for k, x in enumerate(x_reads(0)):
        fill[28 + 4 * (k + 2) + 1].append(x)
    fill[37].append(f"v_add_u32 v{AX+1}, s{sDLT}, v{AX+1}")
    if not tail:
        items = dma_x()
        for g, x in zip([38, 40, 44, 48, 52], items):
            fill[g].append(x)
    else:
        chk = [f"v_cmp_eq_u32 s[{sOK}:{sOK+1}], s{sNON}, v{FL}"]
        for k in range(1, 4):
            chk += [f"v_cmp_eq_u32 vcc, s{sNON}, v{FL+k}", f"s_and_b64 s[{sOK}:{sOK+1}], s[{sOK}:{sOK+1}], vcc"]
        for g, x in zip([38, 40, 40, 42, 42, 44, 44], chk):
            fill[g].append(x)
        ld = [f"buffer_load_dwordx4 {vr(CSV4,4)}, v{VCS}, {WS}, 0 offen sc1"]
        ld += [f"buffer_load_dwordx2 {vr(RSV+2*k,2)}, v{VRS}, {WS}, 0 offen offset:{128*k} sc1" for k in range(4)]
        ld += [f"buffer_load_dwordx4 {vr(FL,4)}, v{VL16}, {WS}, s{T4} offen sc1"]
        for g, x in zip([38, 40, 42, 46, 48, 50], ld):
            fill[g].append(x)
    body = []
    for i in range(56):
        t, tau, rho = i // 28, (i % 28) // 4, i % 4
        a = acc(rho, tau)
        body.append(f"v_mfma_f32_16x16x32_bf16 {vr(a,4)}, {vr(WF+4*tau,4)}, {vr(XF[t]+4*rho,4)}, {vr(a,4)}")
        body += fill[i]
    return lgkm_waits(body, True)


SC = 128
CSR = 152
TU, TE, TL, PKD, PQ = 180, 188, 196, 196, 204


def two_quads(kind, quads, outs):
    o = []
    prs = [(a + 2 * h, c + 2 * h, SC + 6 * r, TU + 4 * q + 2 * h, TE + 4 * q + 2 * h) for q, (a, c, r) in enumerate(quads) for h in range(2)]
    for a, c, s, u, x in prs:
        o.append(f"v_pk_fma_f32 {vr(u,2)}, {vr(c,2)}, {vr(s,2)}, {vr(a,2)} op_sel_hi:[1,0,1]")
    if kind == "v":
        for a, c, s, u, x in prs:
            o.append(f"v_pk_mul_f32 {vr(u,2)}, {vr(u,2)}, {vr(s,2)} op_sel:[0,1]")
    elif kind in ("phi", "mix"):
        for a, c, s, u, x in prs:
            o.append(f"v_pk_mul_f32 {vr(x,2)}, {vr(u,2)}, {vr(s+2,2)} op_sel_hi:[1,0]")
        if kind == "mix":
            for a, c, s, u, x in prs:
                o.append(f"v_pk_mul_f32 {vr(a,2)}, {vr(u,2)}, {vr(s,2)} op_sel:[0,1]")
        for a, c, s, u, x in prs:
            for k in range(2):
                o.append(f"v_exp_f32_e64 v{x+k}, v{x+k} clamp")
                o.append(f"v_max_f32 v{u+k}, v{s+4}, v{u+k}")
        for a, c, s, u, x in prs:
            o.append(f"v_pk_fma_f32 {vr(u,2)}, {vr(u,2)}, {vr(s,2)}, {vr(x,2)} op_sel:[0,1,0]")
        if kind == "mix":
            for a, c, s, u, x in prs:
                for k in range(2):
                    o.append(f"v_cndmask_b32 v{u+k}, v{u+k}, v{a+k}, s[{sHM}:{sHM+1}]")
    else:
        for a, c, s, u, x in prs:
            o.append(f"v_pk_mul_f32 {vr(x,2)}, {vr(u,2)}, {vr(s+2,2)} op_sel_hi:[1,0] neg_lo:[0,1] neg_hi:[0,1]")
        for a, c, s, u, x in prs:
            o += [f"v_exp_f32 v{x}, v{x}", f"v_exp_f32 v{x+1}, v{x+1}"]
        for a, c, s, u, x in prs:
            o.append(f"v_pk_fma_f32 {vr(x,2)}, {vr(x,2)}, {vr(s+2,2)}, {vr(s+2,2)} op_sel:[0,1,1]")
        for a, c, s, u, x in prs:
            o += [f"v_rcp_f32 v{x}, v{x}", f"v_rcp_f32 v{x+1}, v{x+1}"]
        for a, c, s, u, x in prs:
            o.append(f"v_pk_mul_f32 {vr(u,2)}, {vr(u,2)}, {vr(x,2)}")
    for k, (a, c, s, u, x) in enumerate(prs):
        o.append(f"v_cvt_pk_bf16_f32 v{outs[k>>1]+(k&1)}, v{u}, v{u+1}")
    return o


def poll(e, vq, cfg, tag, vaddr, soff, mask, vdst=2):
    e(f"s_mov_b32 s{T3}, 0")
    e(f"L_{tag}:")
    vq.op(f"buffer_load_dword v{vdst}, v{vaddr}, {WS}, s{soff} offen sc1", tag)
    e(f"s_add_u32 s{T3}, s{T3}, 1")
    vq.drain()
    e(f"v_cmp_eq_u32 vcc, s{sNON}, v{vdst}\ns_nop 0\ns_and_b32 s{T2}, vcc_lo, {mask}\ns_cmp_eq_u32 s{T2}, {mask}\ns_cbranch_scc1 L_{tag}_ok")
    e(f"s_cmp_lt_u32 s{T3}, {cfg.spin}\ns_cbranch_scc1 L_{tag}\nL_{tag}_ok:")


def flag_store(e, vq, soffs, tag):
    e(f"s_cmp_lg_u32 s{sW}, 0\ns_cbranch_scc1 L_{tag}\nv_mov_b32 v2, s{sNON}\nv_cmp_eq_u32 vcc, 0, v1\nv_mov_b32 v3, {OOB}\nv_cndmask_b32 v3, v3, 0, vcc")
    for so in soffs:
        e(f"buffer_store_dword v2, v3, {WS}, s{so} offen sc1")
    e(f"L_{tag}:")


sH, sO, sWp, sWo, sFH, sFX, sFO, sHst = 4, 8, 12, 13, 14, 15, 18, 19
VFP = 253
HR, WOR, XR = 128, (96, 208), 232


def post_loop(e, ty, cfg):
    tag = f"t{ty}"
    vq = VmQ(e)
    e(f"s_waitcnt vmcnt(0) lgkmcnt(0)\ns_cmp_eq_u64 s[{sOK}:{sOK+1}], -1\ns_cbranch_scc0 L_{tag}_slow\nL_{tag}_fast:")
    e(f"v_add_f32 v{CSV4}, v{CSV4}, v{CSV4+1}\nv_add_f32 v{CSV4+2}, v{CSV4+2}, v{CSV4+3}\nv_lshlrev_b32 v2, 2, v0\nv_add_u32 v2, {CS_L}, v2\nv_add_f32 v{CSV4}, v{CSV4}, v{CSV4+2}")
    e(f"ds_write_b32 v2, v{CSV4}")
    for r in range(4):
        e(f"v_rcp_f32 v{SC+6*r+3}, v{RSV+2*r+1}")
    for r in range(4):
        s = SC + 6 * r
        e(f"v_sub_f32 v{s}, 0, v{RSV+2*r}\nv_mov_b32 v{s+1}, v{RSV+2*r+1}\nv_mul_f32 v{s+2}, {LOG2E}, v{RSV+2*r+1}\nv_mul_f32 v{s+4}, {f2u(1e-6)}, v{s+3}")
    e(f"v_lshrrev_b32 v3, 4, v1\nv_lshlrev_b32 v3, 4, v3\ns_mul_i32 s{T0}, s{sC}, 448\ns_add_u32 s{T0}, s{T0}, {CS_L}\nv_add_u32 v3, s{T0}, v3")
    e(f"s_lshl_b32 s{T0}, s{sRB}, 1\ns_add_u32 s{T0}, s{T0}, s{sTY}\ns_lshl_b32 s{T0}, s{T0}, 2")
    for k in range(4):
        e(f"s_xor_b32 s{T1}, s{sW}, {k}\ns_add_u32 s{T1}, s{T1}, s{T0}\ns_mul_i32 s{sH+k}, s{T1}, 49152\ns_mul_i32 s{sO+k}, s{T1}, 20480")
    e(f"s_mul_i32 s{T1}, s{sW}, 12288\ns_mul_i32 s{T2}, s{sW}, 5120\ns_add_u32 s{T2}, s{T2}, {OP_OFF}")
    for k in range(4):
        e(f"s_add_u32 s{sH+k}, s{sH+k}, s{T1}\ns_add_u32 s{sO+k}, s{sO+k}, s{T2}")
    e(f"s_mul_i32 s{T0}, s{sHG}, {340*1024}\ns_add_u32 s{T0}, s{T0}, {WP_OFF}\ns_mul_i32 s{T1}, s{sW}, {60*1024}\ns_add_u32 s{sWp}, s{T0}, s{T1}")
    e(f"s_mul_i32 s{T1}, s{sW}, {25*1024}\ns_add_u32 s{sWo}, s{T0}, s{T1}\ns_add_u32 s{sWo}, s{sWo}, {240*1024}")
    e(f"s_lshl_b32 s{T0}, s{sRB}, 7\ns_add_u32 s{sFH}, s{T0}, {FH_OFF}\ns_add_u32 s{sFO}, s{T0}, {FO_OFF}\ns_lshl_b32 s{T0}, s{sHG}, 7\ns_add_u32 s{sFX}, s{T0}, {FK_OFF}")
    e(f"v_lshlrev_b32 v{VFP}, 3, v1\nv_mov_b32 v4, {OOB}\nv_cmp_gt_u32 vcc, 16, v1\nv_cndmask_b32 v{VFP}, v4, v{VFP}, vcc")
    e(f"s_lshl_b32 s{T0}, s{sRB}, 1\ns_add_u32 s{T0}, s{T0}, s{sR}\ns_mul_i32 s{sHst}, s{T0}, {4*49152}")
    e(f"s_lshr_b32 s{T1}, s{sHG}, 2\ns_mul_i32 s{T1}, s{T1}, {24*1024}\ns_add_u32 s{sHst}, s{sHst}, s{T1}")
    e(f"s_and_b32 s{T1}, s{sHG}, 3\ns_lshl_b32 s{T1}, s{T1}, 1\ns_add_u32 s{T1}, s{T1}, s{sC}\ns_lshl_b32 s{T1}, s{T1}, {10+ty}\ns_add_u32 s{sHst}, s{sHst}, s{T1}")
    if ty:
        e(f"s_add_u32 s{sHst}, s{sHst}, 8192")
    e("s_waitcnt lgkmcnt(0)\ns_barrier")
    for k in range(7):
        e(f"ds_read_b128 {vr(CSR+4*k,4)}, v3 offset:{64*k}")
    e(f"s_or_b32 s{T0}, s2, s{sW}\ns_mov_b32 s{T1}, {EP_OFF}\ns_cmp_lg_u32 s{T0}, 0\ns_cbranch_scc1 L_{tag}_noep")
    e(f"v_mov_b32 v2, s{sNON}\nv_cmp_eq_u32 vcc, 0, v1\nv_mov_b32 v5, {OOB}\nv_cndmask_b32 v5, v5, 0, vcc\nbuffer_store_dword v2, v5, {WS}, s{T1} offen sc1\nL_{tag}_noep:")

    b2 = []
    for n in range(60):
        it = [f"buffer_load_dwordx4 {ar(4*n,4)}, v{VL16}, {WS}, s{sWp} offen offset:{1024*(n&3)} sc1"]
        if n & 3 == 3:
            it.append(f"s_add_u32 s{sWp}, s{sWp}, 4096")
        b2.append(it)

    def run(stream, every):
        k = 0
        for x in stream:
            if isinstance(x, tuple):
                vq.op(x[0], x[1])
            else:
                e(x)
                k += 1
                if k % every == 0 and b2:
                    it = b2.pop(0)
                    vq.op(it[0], "b2")
                    e.ext(it[1:])

    def h_groups(taus):
        st = []
        n = 0
        for rho in range(4):
            for k in range(0, len(taus), 2):
                t0, t1 = taus[k], taus[k + 1]
                out = PKD + 4 * (n & 1)
                st += two_quads("silu", [(acc(rho, t0), CSR + 4 * t0, rho), (acc(rho, t1), CSR + 4 * t1, rho)], [out, out + 2])
                st.append((f"buffer_store_dwordx4 {vr(out,4)}, v{VL16}, {WS}, s{sHst} offen offset:{512*k} sc1", "hst"))
                n += 1
            st.append(f"s_add_u32 s{sHst}, s{sHst}, 49152")
        return st

    e("s_waitcnt lgkmcnt(0)")
    ev = cfg.b2_every
    if ty == 0:
        e(f"v_and_b32 v2, 15, v1\ns_lshl_b32 s{T0}, s{sR}, 6\nv_add_u32 v2, s{T0}, v2\nv_mul_u32_u24 v2, 200, v2\ns_mul_i32 s{T0}, s{sC}, 96\nv_add_u32 v2, s{T0}, v2\nv_lshrrev_b32 v3, 4, v1")
        for tau in range(5):
            e(f"v_add_u32 v9, {4*tau}, v3\nv_mul_u32_u24 v10, 52, v9\nv_lshrrev_b32 v10, 8, v10\nv_lshl_add_u32 v11, v9, 3, v2\nv_lshl_add_u32 v11, v10, 3, v11")
            e(f"v_lshrrev_b32 v10, 1, v10\nv_mul_u32_u24 v10, {V_L-96}, v10\nv_add_u32 v{4+tau}, v10, v11")
        e(f"v_lshlrev_b32 v9, 5, v3\nv_mul_u32_u24 v10, 200, v9\nv_and_b32 v9, 15, v1\nv_mul_u32_u24 v9, 200, v9\nv_add_u32 v9, v9, v10")
        e(f"s_mul_i32 s{T0}, s{sW}, 48\nv_add_u32 v9, s{T0}, v9\nv_mov_b32 v10, 0x3f80\nv_mov_b32 v11, 0")
        e(f"ds_write_b64 v9, v[10:11] offset:{V_L+40}\nds_write_b64 v9, v[10:11] offset:{V_L+40+3200}")
        st = []
        n = 0
        grp = [("phi", [(0, r), (1, r)]) for r in range(4)] + [("mix", [(2, 0), (2, 1)]), ("mix", [(2, 2), (2, 3)])] + [("v", [(3, r), (4, r)]) for r in range(4)]
        for kind, qs in grp:
            out = PKD + 4 * (n & 1)
            st += two_quads(kind, [(acc(r, t), CSR + 4 * t, r) for t, r in qs], [out, out + 2])
            for q, (t, r) in enumerate(qs):
                st.append(f"ds_write_b64 v{4+t}, {vr(out+2*q,2)} offset:{3200*r}")
            n += 1
            if n == 5:
                st.append("s_waitcnt lgkmcnt(2)")
        kvs = []
        a = lambda s: kvs.extend(s.split("\n"))
        a("v_bfe_u32 v2, v1, 2, 2\nv_lshlrev_b32 v2, 3, v2\nv_lshrrev_b32 v3, 5, v1\nv_lshl_add_u32 v2, v3, 1, v2\nv_mul_u32_u24 v2, 200, v2")
        a(f"v_bfe_u32 v4, v1, 4, 1\nv_lshl_add_u32 v2, v4, 5, v2\nv_and_b32 v4, 3, v1\nv_lshl_add_u32 v2, v4, 3, v2")
        a(f"s_lshl_b32 s{T0}, s{sC}, 1\ns_add_u32 s{T0}, s{T0}, s{sR}\ns_mul_i32 s{T1}, s{T0}, 48\nv_add_u32 v2, s{T1}, v2")
        a(f"v_and_b32 v4, 31, v1\nv_mul_u32_u24 v5, 320, v3\nv_lshl_add_u32 v5, v4, 2, v5\nv_mov_b32 v6, {OOB}")
        a(f"v_cmp_gt_u32 vcc, 20, v4\ns_lshl_b32 s{T1}, s{sHG}, 2\ns_add_u32 s{T1}, s{T1}, s{T0}\nv_cndmask_b32 v14, v6, v5, vcc")
        a(f"v_cmp_gt_u32 vcc, 20, v1\ns_mul_i32 s{T1}, s{T1}, 1680\ns_add_u32 s{T1}, s{T1}, {KV_OFF}\nv_cndmask_b32 v15, v6, v5, vcc")
        a("s_waitcnt lgkmcnt(0)\ns_barrier")
        slots = [acc(r, t) for r in range(4) for t in range(4)]
        body = []
        for m in range(8):
            o = (m >> 1) * 6400 + (m & 1) * 800
            ra, rb_ = slots[2 * m], slots[2 * m + 1]
            body += [f"ds_read_b64_tr_b16 {vr(ra,2)}, v2 offset:{V_L+o}", f"ds_read_b64_tr_b16 {vr(ra+2,2)}, v2 offset:{V_L+o+200}",
                     f"ds_read_b64_tr_b16 {vr(rb_,2)}, v2 offset:{PK_L+o}", f"ds_read_b64_tr_b16 {vr(rb_+2,2)}, v2 offset:{PK_L+o+200}"]
            if m >= 2:
                mm = m - 2
                body.append(f"v_mfma_f32_32x32x16_bf16 {vr(208,16)}, {vr(slots[2*mm],4)}, {vr(slots[2*mm+1],4)}, {'0' if mm == 0 else vr(208,16)}")
        for mm in (6, 7):
            body.append(f"v_mfma_f32_32x32x16_bf16 {vr(208,16)}, {vr(slots[2*mm],4)}, {vr(slots[2*mm+1],4)}, {vr(208,16)}")
        kvs += lgkm_waits(body, False)
        for i in range(12):
            kvs.append((f"buffer_atomic_add_f32 v{208+i}, v{14 if i < 9 else 15}, {WS}, s{T1} offen offset:{(8*(i>>2)+(i&3))*80}", "atom"))
        if cfg.hfirst:
            run(h_groups([5, 6]), ev)
            run(st, ev)
            k = kvs.index("s_barrier")
            run(kvs[:k], 1000)
            vq.wait("hst")
            e("s_barrier")
            e(f"s_lshl_b32 s{T0}, s{sHG}, 4\ns_add_u32 s{T0}, s{T0}, s{sFH}")
            flag_store(e, vq, [T0], f"{tag}_fh")
            run(kvs[k + 1:], 1000)
            stamp(e, cfg, 4)
            run(["s_nop 0"] * 12, 1)
            vq.wait("atom")
            e("s_barrier")
            e(f"s_lshl_b32 s{T0}, s{sRB}, 3\ns_add_u32 s{T0}, s{T0}, s{sFX}")
            flag_store(e, vq, [T0], f"{tag}_fk")
        else:
            run(st, ev)
            run(kvs, 1000)
            run(h_groups([5, 6]), ev)
            stamp(e, cfg, 4)
            run(["s_nop 0"] * 12, 1)
            vq.wait("hst")
            e("s_barrier")
            e(f"s_lshl_b32 s{T0}, s{sHG}, 4\ns_add_u32 s{T0}, s{T0}, s{sFH}\ns_lshl_b32 s{T1}, s{sRB}, 3\ns_add_u32 s{T1}, s{T1}, s{sFX}")
            flag_store(e, vq, [T1, T0], f"{tag}_fh")
        stamp(e, cfg, 5)
        run(["s_nop 0"] * 60, 1)
    else:
        run(h_groups([3, 4, 5, 6]), ev)
        st = []
        for r in range(4):
            st += two_quads("phi", [(acc(r, 0), CSR, r), (acc(r, 1), CSR + 4, r)], [PQ + 6 * r, PQ + 6 * r + 2])
        for r in (0, 2):
            st += two_quads("phi", [(acc(r, 2), CSR + 8, r), (acc(r + 1, 2), CSR + 8, r + 1)], [PQ + 6 * r + 4, PQ + 6 * r + 10])
        run(st, ev)
        stamp(e, cfg, 4)
        vq.wait("hst")
        e("s_barrier")
        e(f"s_lshl_b32 s{T0}, s{sHG}, 4\ns_add_u32 s{T0}, s{T0}, s{sFH}\ns_add_u32 s{T0}, s{T0}, 8")
        flag_store(e, vq, [T0], f"{tag}_fh")
        stamp(e, cfg, 5)
        st = []
        a = lambda s: st.extend(s.split("\n"))
        a(f"v_and_b32 v2, 15, v1\nv_mul_u32_u24 v12, 80, v2\nv_lshrrev_b32 v3, 4, v1\nv_lshlrev_b32 v3, 4, v3\nv_mov_b32 v13, {OOB}\nv_and_b32 v14, 3, v1\nv_add_u32 v14, 16, v14")
        a(f"v_lshrrev_b32 v2, 2, v2\ns_lshl_b32 s{T0}, s{sC}, 1")
        for h in range(2):
            a(f"s_add_u32 s{T1}, s{T0}, {h}\nv_cmp_eq_u32 vcc, s{T1}, v2\nv_cndmask_b32 v15, 20, v14, vcc\nv_mul_u32_u24 v15, 80, v15")
            for q in range(2):
                d0 = [[0, 64], [-16, 48]][h][q]
                cond = [[None, "v_cmp_gt_u32 vcc, 16, v1"], ["v_cmp_lt_u32 vcc, 15, v1", "v_cmp_gt_u32 vcc, 32, v1"]][h][q]
                r0, r1 = 4 + 4 * h + q, 4 + 4 * h + 2 + q
                a(f"v_add_u32 v{r0}, {d0 & 0xffffffff}, v3")
                if cond:
                    a(f"{cond}\nv_add_u32 v{r1}, v{r0}, v15\nv_add_u32 v{r0}, v{r0}, v12\nv_cndmask_b32 v{r1}, v13, v{r1}, vcc\nv_cndmask_b32 v{r0}, v13, v{r0}, vcc")
                else:
                    a(f"v_add_u32 v{r1}, v{r0}, v15\nv_add_u32 v{r0}, v{r0}, v12")
        a(f"s_lshl_b32 s{T1}, s{sHG}, 2\ns_add_u32 s{T1}, s{T1}, s{T0}\ns_mul_i32 s{T4}, s{T1}, 1680\ns_add_u32 s{T4}, s{T4}, {KV_OFF}\ns_add_u32 s{T5}, s{T4}, 1680")
        run(st, 2)
        run(["s_nop 0"] * 60, 1)
        poll(e, vq, cfg, f"{tag}_pk", VFP, sFX, 0xffff)
        for h in range(2):
            for E in range(2):
                for q in range(2):
                    k = 4 * h + 2 * E + q
                    vq.op(f"buffer_load_dwordx4 {vr(96+4*k,4)}, v{4+k}, {WS}, s{T4+h} offen sc1", "kv")

    seq = [("h", m) for m in range(12)] + [("o", m) for m in range(5)]
    wo = []
    for n in range(25):
        it = []
        if n % 4 == 0:
            it = [f"s_add_u32 m0, s{T1}, {1024*n}", f"s_add_u32 s{T0}, s{sWo}, {1024*n}"]
        wo.append(it + [f"buffer_load_dwordx4 v{VL16}, {WS}, s{T0} offen offset:{1024*(n&3)} sc1 lds"])

    def issue(n):
        kind, m = seq[n]
        base = sH if kind == "h" else sO
        for r in range(4):
            vq.op(f"buffer_load_dwordx4 {vr(HR+16*(n&3)+4*r,4)}, v{VL16}, {WS}, s{base+r} offen offset:{1024*(m&3)} sc1", n)
        if (m & 3) == 3:
            for r in range(4):
                e(f"s_add_u32 s{base+r}, s{base+r}, 4096")

    poll(e, vq, cfg, f"{tag}_ph", VFP, sFH, 0xffff, 3)
    stamp(e, cfg, 6)
    for n in range(3):
        issue(n)
    if ty == 1:
        KT = 228
        vq.wait("kv")
        for k in range(8):
            for q in range(2):
                e(f"v_cvt_pk_bf16_f32 v{KT+2*k+q}, v{96+4*k+2*q}, v{96+4*k+2*q+1}")
        N = lambda h, E, r: 16 + 4 * (8 * h + 4 * E + r)
        for h in range(2):
            for E in (1, 0):
                for r in range(4):
                    e(f"v_mfma_f32_16x16x32_bf16 {vr(N(h,E,r),4)}, {vr(KT+8*h+4*E,4)}, {vr(PQ+6*r+2*h,4)}, 0")
        e(f"s_lshl_b32 s{T0}, s{sHG}, 1\ns_add_u32 s{T0}, s{T0}, s{sC}\ns_lshr_b32 s{T1}, s{T0}, 2\ns_add_u32 s{T0}, s{T0}, s{T1}\ns_lshl_b32 s{T0}, s{T0}, 10")
        e(f"s_lshl_b32 s{T1}, s{sRB}, 1\ns_add_u32 s{T1}, s{T1}, s{sR}\ns_mul_i32 s{T1}, s{T1}, {4*20480}\ns_add_u32 s{T1}, s{T1}, {OP_OFF}\ns_add_u32 s{T4}, s{T1}, s{T0}")
        e(f"s_lshr_b32 s{T0}, s{sHG}, 1\ns_mul_i32 s{T0}, s{T0}, 5120\ns_add_u32 s{T5}, s{T1}, s{T0}\ns_and_b32 s{T0}, s{sHG}, 1\ns_lshl_b32 s{T0}, s{T0}, 3\ns_add_u32 s{T5}, s{T5}, s{T0}\ns_add_u32 s{T5}, s{T5}, 4096")
        e(f"v_lshrrev_b32 v4, 5, v1\nv_cmp_eq_u32 vcc, s{sC}, v4\nv_mov_b32 v5, {OOB}\nv_cndmask_b32 v4, v5, v{VL16}, vcc\ns_mov_b32 s{sOK}, 0xffff0000\ns_mov_b32 s{sOK+1}, 0xffff0000")
        for h in range(2):
            for r in range(4):
                e(f"v_mov_b32 v{96+4*(4*h+r)}, v{N(h,1,r)}\nv_mov_b32 v{97+4*(4*h+r)}, v{N(h,1,r)}")
        for k in range(8):
            e(f"v_permlane16_swap_b32 v{96+4*k}, v{97+4*k}")
        for k in range(8):
            e(f"v_add_f32 v{98+4*k}, {f2u(1e-6)}, v{96+4*k+(1 if k < 4 else 0)}")
        for k in range(8):
            e(f"v_rcp_f32 v{98+4*k}, v{98+4*k}")
        for r in range(4):
            for h in range(2):
                for E in range(2):
                    for p in range(2):
                        n0 = N(h, E, r) + 2 * p
                        e(f"v_pk_mul_f32 {vr(n0,2)}, {vr(n0,2)}, {vr(98+4*(4*h+r),2)} op_sel_hi:[1,0]")
            ob = 80 + 8 * (r & 1)
            for h in range(2):
                for p in range(2):
                    e(f"v_cvt_pk_bf16_f32 v{ob+2*h+p}, v{N(h,0,r)+2*p}, v{N(h,0,r)+2*p+1}")
            vq.op(f"buffer_store_dwordx4 {vr(ob,4)}, v{VL16}, {WS}, s{T4} offen sc1", "ost")
            for h in range(2):
                for p in range(2):
                    e(f"v_cvt_pk_bf16_f32 v{ob+4+2*h+p}, v{N(h,1,r)+2*p}, v{N(h,1,r)+2*p+1}")
            for p in range(2):
                e(f"v_cndmask_b32 v{ob+4+p}, v{ob+4+p}, v{ob+6+p}, s[{sOK}:{sOK+1}]")
            vq.op(f"buffer_store_dwordx2 {vr(ob+4,2)}, v4, {WS}, s{T5} offen sc1", "ost")
            e(f"s_add_u32 s{T4}, s{T4}, 20480\ns_add_u32 s{T5}, s{T5}, 20480")
    e(f"s_mul_i32 s{T1}, s{sW}, 25600\ns_add_u32 s{T1}, s{T1}, {WO_L}\nv_add_u32 v5, s{T1}, v{VL16}")
    e(f"s_lshl_b32 s{T0}, s{sRB}, 1\ns_add_u32 s{T0}, s{T0}, s{sTY}\ns_lshl_b32 s{T0}, s{T0}, 6\ns_lshl_b32 s{T2}, s{sW}, 4\ns_add_u32 s{T0}, s{T0}, s{T2}")
    e(f"v_and_b32 v6, 15, v1\nv_add_u32 v6, s{T0}, v6\nv_mul_u32_u24 v6, 1280, v6\nv_lshrrev_b32 v7, 4, v1\nv_lshl_add_u32 v6, v7, 3, v6\ns_mul_i32 s{T0}, s{sHG}, 160\nv_add_u32 v10, s{T0}, v6")
    e(f"s_mov_b32 s{SRD_X+2}, s{sNX}")
    for n in range(17):
        kind, m = seq[n]
        mf = []
        for r in range(4):
            for c in range(5):
                a_ = 16 + 4 * (5 * r + c)
                wb = ar(20 * m + 4 * c, 4) if kind == "h" else vr(WOR[m & 1] + 4 * c, 4)
                mf.append(f"v_mfma_f32_16x16x32_bf16 {vr(a_,4)}, {wb}, {vr(HR+16*(n&3)+4*r,4)}, {'0' if n == 0 else vr(a_,4)}")
        if n == 9:
            e(f"v_cmp_eq_u32 vcc, s{sNON}, v3\ns_nop 0\ns_and_b32 s{T2}, vcc_lo, 0xff\ns_cmp_eq_u32 s{T2}, 0xff\ns_cbranch_scc1 L_{tag}_po_ok")
            keep = (list(vq.q), vq.done)
            poll(e, vq, cfg, f"{tag}_po", VFP, sFO, 0xff, 3)
            vq.q, vq.done = keep
        if n + 3 < 17:
            issue(n + 3)
        if n == 7:
            vq.op(f"buffer_load_dword v3, v{VFP}, {WS}, s{sFO} offen sc1", "fo")
        if n == 13:
            for c in range(5):
                vq.op(f"buffer_load_dwordx2 {vr(XR+2*c,2)}, v10, s[{SRD_X}:{SRD_X+3}], 0 offen offset:{32*c}", "x")
        if n == 8:
            vq.wait("fo")
        if n == 11:
            vq.wait("wo")
        if n >= 11 and n < 16:
            u = n - 11
            for c in range(5):
                e(f"ds_read_b128 {vr(WOR[u&1]+4*c,4)}, v5 offset:{5120*u+1024*c}")
        vq.wait(n)
        if n == 0:
            stamp(e, cfg, 7)
        if kind == "o":
            e(f"s_waitcnt lgkmcnt({5 if n < 16 else 0})")
        if ty == 1 and n == 2:
            vq.wait("ost")
            e("s_barrier")
            e(f"s_lshl_b32 s{T2}, s{sHG}, 3\ns_add_u32 s{T2}, s{T2}, s{sFO}")
            flag_store(e, vq, [T2], f"{tag}_fo")
        for i, x in enumerate(mf):
            e(x)
            if n < 9 and i in (3, 9, 15) and wo:
                it = wo.pop(0)
                e.ext(it[:-1])
                vq.op(it[-1], "wo")
        if n == 11:
            stamp(e, cfg, 8)
    stamp(e, cfg, 9)
    for k in range(1, 4):
        e(f"s_xor_b32 s{T0}, s{sW}, {k}\ns_mul_i32 s{T0}, s{T0}, 25600\ns_add_u32 s{T0}, s{T0}, {WO_L+5120*(k-1)}\nv_add_u32 v{5+k}, s{T0}, v{VL16}")
    for k in range(15):
        e(f"ds_write_b128 v5, {vr(36+4*k,4)} offset:{1024*k}")
    e("s_waitcnt lgkmcnt(0)\ns_barrier")
    for c in range(5):
        for k in range(3):
            e(f"ds_read_b128 {vr(128+12*c+4*k,4)}, v{6+k} offset:{1024*c}")
    vq.wait("x")
    for c in range(5):
        b, a_, xr = 128 + 12 * c, 16 + 4 * c, XR + 2 * c
        e(f"v_lshlrev_b32 v12, 16, v{xr}\nv_and_b32 v13, 0xffff0000, v{xr}\nv_lshlrev_b32 v14, 16, v{xr+1}\nv_and_b32 v15, 0xffff0000, v{xr+1}")
        for h in range(2):
            e(f"v_pk_add_f32 {vr(a_+2*h,2)}, {vr(a_+2*h,2)}, {vr(12+2*h,2)}")
        e(f"s_waitcnt lgkmcnt({12-3*c})")
        for h in range(2):
            e(f"v_pk_add_f32 {vr(b+2*h,2)}, {vr(b+2*h,2)}, {vr(b+4+2*h,2)}")
        for h in range(2):
            e(f"v_pk_add_f32 {vr(a_+2*h,2)}, {vr(a_+2*h,2)}, {vr(b+8+2*h,2)}")
        for h in range(2):
            e(f"v_pk_add_f32 {vr(a_+2*h,2)}, {vr(a_+2*h,2)}, {vr(b+2*h,2)}")
        e(f"v_cvt_pk_bf16_f32 v{b}, v{a_}, v{a_+1}\nv_cvt_pk_bf16_f32 v{b+1}, v{a_+2}, v{a_+3}")
        vq.op(f"buffer_store_dwordx2 {vr(b,2)}, v10, s[{SRD_O}:{SRD_O+3}], 0 offen offset:{32*c} {cfg.out_flags}", "out")
    stamp(e, cfg, 10)
    if cfg.stamps:
        e(f"s_waitcnt vmcnt(0) lgkmcnt(0)\ns_memrealtime s[98:99]\ns_waitcnt lgkmcnt(0)")
        e(f"s_lshl_b32 s3, s2, 2\ns_add_u32 s3, s3, s{sW}\ns_lshl_b32 s3, s3, 6\ns_add_u32 s3, s3, {ST_OFF}\nv_mov_b32 v2, 0")
        for i in range(12):
            e(f"v_writelane_b32 v2, s{76+2*i}, {i}")
        e(f"v_lshlrev_b32 v3, 2, v1\nv_mov_b32 v4, {OOB}\nv_cmp_gt_u32 vcc, 16, v1\nv_cndmask_b32 v3, v4, v3, vcc\nbuffer_store_dword v2, v3, {WS}, s3 offen")
    e("s_endpgm")
    e(f"L_{tag}_slow:\ns_mov_b32 s{T3}, 0\nL_{tag}_slow2:")
    e(f"buffer_load_dwordx4 {vr(FL,4)}, v{VL16}, {WS}, s{T4} offen sc1\ns_add_u32 s{T3}, s{T3}, 1\ns_waitcnt vmcnt(0)")
    e(f"v_cmp_eq_u32 s[{sOK}:{sOK+1}], s{sNON}, v{FL}")
    for k in range(1, 4):
        e(f"v_cmp_eq_u32 vcc, s{sNON}, v{FL+k}\ns_nop 0\ns_and_b64 s[{sOK}:{sOK+1}], s[{sOK}:{sOK+1}], vcc")
    e(f"s_cmp_eq_u64 s[{sOK}:{sOK+1}], -1\ns_cbranch_scc1 L_{tag}_slow3\ns_cmp_lt_u32 s{T3}, {cfg.spin}\ns_cbranch_scc1 L_{tag}_slow2\nL_{tag}_slow3:")
    e(f"buffer_load_dwordx4 {vr(CSV4,4)}, v{VCS}, {WS}, 0 offen sc1")
    for k in range(4):
        e(f"buffer_load_dwordx2 {vr(RSV+2*k,2)}, v{VRS}, {WS}, 0 offen offset:{128*k} sc1")
    e(f"s_waitcnt vmcnt(0)\ns_branch L_{tag}_fast")


def prologue_type(e, ty, cfg, vq):
    tag = f"t{ty}"
    e(f"s_lshl_b32 s{T0}, s{sW}, 4\ns_mul_i32 s{T1}, s{sHG}, 160")
    w_offsets(e, ty)
    for x in dma_w(ty):
        (vq.op(x, "s0") if x.startswith("buffer") else e(x))
    e.ext(advance_k())
    e(f"s_mov_b32 s{sDL}, {STG}")
    if ty == 1:
        e(f"s_lshl_b32 s{T0}, s{sRB}, 3\ns_add_u32 s{T0}, s{T0}, s{sHG}\ns_mul_i32 s{T0}, s{T0}, 3\ns_add_u32 s{T0}, s{T0}, s{sW}")
        e(f"s_cmp_eq_u32 s{sW}, 3\ns_cselect_b32 s{T0}, 340, s{T0}\ns_min_u32 s{T0}, s{T0}, 340")
        e(f"s_mul_i32 s10, s{T0}, 52429\ns_lshr_b32 s10, s10, 18\ns_mul_i32 s{T1}, s10, 5\ns_sub_u32 s11, s{T0}, s{T1}")
        e(f"s_sub_u32 s{T1}, s10, 48\ns_mul_i32 s{T2}, s{T1}, 52\ns_lshr_b32 s{T2}, s{T2}, 8\ns_mul_i32 s{T3}, s{T2}, 5\ns_sub_u32 s{T3}, s{T1}, s{T3}")
        e(f"s_mul_i32 s{T2}, s{T2}, 160\ns_mul_i32 s{T4}, s{T3}, 40\ns_cmp_eq_u32 s{T3}, 4\ns_cselect_b32 s{T4}, 16, s{T4}\ns_cselect_b32 s22, 80, 20\ns_cselect_b32 s23, 20, 4\ns_add_u32 s{T2}, s{T2}, s{T4}")
        e(f"s_lshl_b32 s{T4}, s10, 5\ns_cmp_ge_u32 s10, 48\ns_cselect_b32 s{T2}, s{T2}, s{T4}\ns_cselect_b32 s22, s22, 16\ns_cselect_b32 s23, s23, 4")
        e(f"s_cselect_b32 s{SRD_J}, s8, s14\ns_cselect_b32 s{SRD_J+1}, s9, s15\ns_mov_b32 s{T4}, {1536*1280}\ns_cselect_b32 s{SRD_J+2}, {640*1280}, s{T4}")
        e(f"s_lshl_b32 s{T3}, s{sW}, 13\ns_add_u32 s{T3}, s{T3}, {RP_L}\ns_add_u32 s{T1}, s{sXW}, {2*STG}")
        e(f"s_cmp_eq_u32 s{T0}, 340\ns_cselect_b32 s{SRD_J+2}, 0, s{SRD_J+2}\ns_cselect_b32 s{T5}, {OOB}, 0\ns_cselect_b32 s{T1}, s{T1}, s{T3}\ns_cselect_b32 s{T3}, 0, 1024")
        e(f"s_mul_i32 s{T2}, s{T2}, 1280\ns_lshl_b32 s{T4}, s11, 8\ns_add_u32 s{T2}, s{T2}, s{T4}\ns_mul_i32 s22, s22, 1280\ns_mul_i32 s23, s23, 1280")
        e(f"s_mov_b32 m0, s{T1}\nv_add_u32 v15, s{T5}, v{VL16}")
        e("v_lshrrev_b32 v2, 4, v1\nv_and_b32 v3, 15, v1\nv_lshlrev_b32 v4, 1, v2\nv_xor_b32 v3, v3, v4\nv_mul_u32_u24 v2, 1280, v2\nv_lshl_add_u32 v8, v3, 4, v2\nv_xor_b32 v3, 8, v3\nv_lshl_add_u32 v9, v3, 4, v2")
        for i in range(8):
            if i == 4:
                e(f"s_add_u32 s{T2}, s{T2}, s22")
            if i:
                e(f"s_add_u32 m0, m0, s{T3}")
            e(f"s_mul_i32 s{T0}, s23, {i&3}\ns_add_u32 s{T0}, s{T0}, s{T2}")
            vq.op(f"buffer_load_dwordx4 v{8+(i&1)}, s[{SRD_J}:{SRD_J+3}], s{T0} offen lds", "rp")
        e("v_bfe_u32 v2, v1, 4, 1\nv_bfe_u32 v3, v1, 2, 2\nv_lshl_add_u32 v2, v2, 2, v3\nv_lshrrev_b32 v3, 4, v1\nv_bfe_u32 v4, v1, 2, 2\nv_lshl_add_u32 v3, v3, 2, v4")
        e(f"v_lshlrev_b32 v2, 5, v2\nv_lshl_add_u32 v2, v3, 8, v2\nv_and_b32 v3, 3, v1\nv_lshl_add_u32 v2, v3, 3, v2\nv_add_u32 v14, s{T1}, v2")
    work = read_addrs(ty) + [f"v_mov_b64 {vr(r,2)}, 0" for r in range(ACC + 32, ACC + 112, 2)]
    items = dma_x() + dma_w(ty)
    k = 0
    for i, x in enumerate(work):
        e(x)
        if i % 7 == 6 and k < len(items):
            while not items[k].startswith("buffer"):
                e(items[k]); k += 1
            e("s_nop 0") if items[k - 1].startswith("s_add_u32 m0") and False else None
            vq.op(items[k], "s1"); k += 1
    for x in items[k:]:
        (vq.op(x, "s1") if x.startswith("buffer") else e(x))
    e.ext(advance_k())
    e(f"s_mov_b32 s{sDL}, {2*STG}")
    vq.wait("job")
    e("s_barrier")
    body = []
    for m in range(5):
        body += [f"ds_read_b64_tr_b16 {vr(128+4*m,2)}, v13 offset:{4096*m}", f"ds_read_b64_tr_b16 {vr(130+4*m,2)}, v13 offset:{4096*m+2048}"]
    e.ext(body)
    e("v_mov_b32 v28, 0\nv_mov_b32 v29, 0\nv_mov_b32 v30, 0\nv_mov_b32 v31, 0")
    for k in range(4):
        e(f"v_mov_b32 v{148+k}, 0x3f803f80")
    for k in range(12):
        e(f"v_dot2_f32_bf16 v{28+(k&1)}, v{16+k}, v148, v{28+(k&1)}\nv_dot2_f32_bf16 v{30+(k&1)}, v{16+k}, v{16+k}, v{30+(k&1)}")
    e("s_waitcnt lgkmcnt(0)")
    for m in range(5):
        e(f"v_mfma_f32_16x16x32_bf16 v[152:155], v[148:151], {vr(128+4*m,4)}, {'0' if m == 0 else 'v[152:155]'}")
    e("s_nop 1\nv_add_f32 v28, v28, v29\nv_add_f32 v30, v30, v31")
    for sh in (8, 4, 2, 1):
        e(f"v_add_f32_dpp v28, v28, v28 row_ror:{sh} row_mask:0xf bank_mask:0xf\nv_add_f32_dpp v30, v30, v30 row_ror:{sh} row_mask:0xf bank_mask:0xf")
    e("v_mov_b32 v29, v28\nv_mov_b32 v31, v30\nv_permlane16_swap_b32 v28, v29\nv_permlane16_swap_b32 v30, v31\nv_add_f32 v28, v28, v29\nv_add_f32 v30, v30, v31")
    c = f2u(1.0 / 640)
    e(f"v_mul_f32 v28, {c}, v28\nv_mul_f32 v30, {c}, v30\nv_fma_f32 v30, -v28, v28, v30\nv_max_f32 v30, 0, v30\nv_add_f32 v30, {f2u(1e-5)}, v30\nv_rsq_f32 v29, v30")
    e(f"v_readfirstlane_b32 s{sNON}, v{VEP}")
    vq.op(f"buffer_store_dwordx2 v[28:29], v11, {WS}, 0 offen sc1", "st")
    vq.op(f"buffer_store_dword v152, v12, {WS}, 0 offen sc1", "st")
    e(f"s_mul_i32 s{sNON}, s{sNON}, 0x9E3779B1\ns_add_u32 s{sNON}, s{sNON}, 0x7F4A7C15")
    if ty == 0:
        e(f"s_cmp_eq_u32 s{sRB}, 0\ns_cselect_b32 s{T0}, 0, {OOB}\ns_mul_i32 s{T1}, s{sHG}, 6720\ns_add_u32 s{T1}, s{T1}, {KV_OFF}")
        e(f"v_lshlrev_b32 v2, 4, v0\nv_add_u32 v2, s{T0}, v2\nv_add_u32 v3, 4096, v2\nv_mov_b32 v4, {OOB}\nv_cmp_gt_u32 vcc, 164, v0\nv_cndmask_b32 v3, v4, v3, vcc")
        vq.op(f"buffer_store_dwordx4 v[48:51], v2, {WS}, s{T1} offen sc1", "st")
        vq.op(f"buffer_store_dwordx4 v[48:51], v3, {WS}, s{T1} offen sc1", "st")
    else:
        vq.wait("rp")
        for c_ in range(8):
            e(f"v_xor_b32 v2, {32*c_}, v14")
            e(f"ds_read_b64_tr_b16 {vr(128+4*c_,2)}, v2\nds_read_b64_tr_b16 {vr(130+4*c_,2)}, v2 offset:4096")
            if c_ == 6:
                e("s_waitcnt lgkmcnt(12)")
        for c_ in range(8):
            e(f"s_lshl_b32 s{T0}, s11, 3\ns_add_u32 s{T0}, s{T0}, {c_}\ns_mul_i32 s{T1}, s{T0}, 52429\ns_lshr_b32 s{T1}, s{T1}, 18")
            e(f"s_mul_i32 s{T2}, s{T1}, 335\ns_add_u32 s{T2}, s{T2}, s{T0}\ns_mul_i32 s{T1}, s10, 5\ns_add_u32 s{T2}, s{T2}, s{T1}\ns_lshl_b32 s{T2}, s{T2}, 10\ns_add_u32 s{T2}, s{T2}, {WP_OFF}")
            e(f"s_waitcnt lgkmcnt({14-2*c_ if c_ else 12})")
            vq.op(f"buffer_store_dwordx4 {vr(128+4*c_,4)}, v15, {WS}, s{T2} offen sc1", "st")
    for r in range(ACC, ACC + 32, 2):
        e(f"v_mov_b64 {vr(r,2)}, 0")
    for x in dma_x():
        (vq.op(x, "s2") if x.startswith("buffer") else e(x))
    e(f"s_mov_b32 s{sCUR}, 0\ns_mov_b32 s{sIT}, 0\ns_mov_b32 s{T4}, {FE_OFF}\ns_cmp_eq_u32 s{sW}, 0\ns_cselect_b32 s{T5}, 2, -1")
    vq.wait("s0", "lgkmcnt(0)")
    e("s_barrier")
    stamp(e, cfg, 2)
    first = x_reads(0) + sum([w_reads(ty, 0, t) for t in range(7)], [])
    e.ext(first[:14]); e("s_waitcnt lgkmcnt(8)"); e.ext(first[14:]); e("s_waitcnt lgkmcnt(0)")
    nfirst = vq.count("s1") + 7
    n0 = len(e.l)
    e(f"L_{tag}_loop:")
    e.ext(stage_body(ty, False, tag))
    e(f"s_cmp_lt_u32 s{sIT}, 8\ns_cbranch_scc1 L_{tag}_loop")
    e(f"L_{tag}_tail:")
    e.ext(stage_body(ty, True, tag))
    e(f"s_cmp_lt_u32 s{sIT}, 10\ns_cbranch_scc1 L_{tag}_tail")
    for d in cfg.drop.split(","):
        if d.startswith("lp:"):
            e.l[n0:] = [x for x in e.l[n0:] if not x.startswith(d[3:])]
    stamp(e, cfg, 3)
    post_loop(e, ty, cfg)
    e(f"L_{tag}_first:\ns_waitcnt vmcnt({nfirst}) lgkmcnt(0)\ns_branch L_{tag}_back")
    e(f"L_{tag}_eflag:\nv_mov_b32 v2, s{sNON}\nv_cmp_eq_u32 vcc, 0, v1\nv_mov_b32 v3, {OOB}\ns_lshl_b32 s{T0}, s2, 2\ns_add_u32 s{T0}, s{T0}, {FE_OFF}\nv_cndmask_b32 v3, v3, 0, vcc")
    e(f"buffer_store_dword v2, v3, {WS}, s{T0} offen sc1\ns_branch L_{tag}_back2")


def kernel(cfg):
    e = Em()
    vq = VmQ(e)
    e(f"{NAME}:")
    stamp(e, cfg, 0)
    e("s_cmp_ge_u32 s2, 256\ns_cbranch_scc1 L_end")
    e("s_load_dwordx16 s[4:19], s[0:1], 0\ns_load_dwordx2 s[20:21], s[0:1], 64")
    e(f"v_and_b32 v1, 63, v0\nv_lshrrev_b32 v2, 6, v0\nv_lshlrev_b32 v{VL16}, 4, v1\nv_readfirstlane_b32 s{sW}, v2")
    e(f"s_and_b32 s{T0}, s2, 7\ns_lshr_b32 s{T1}, s2, 3")
    if cfg.pfcode:
        e(f"s_getpc_b64 s[{SRD_J}:{SRD_J+1}]\nL_pc:\ns_sub_u32 s{SRD_J}, s{SRD_J}, L_pc-{NAME}\ns_subb_u32 s{SRD_J+1}, s{SRD_J+1}, 0")
        e(f"s_mov_b32 s{SRD_J+2}, L_end-{NAME}\ns_mov_b32 s{SRD_J+3}, 0x20000")
        e(f"s_lshl_b32 s{T2}, s{T1}, 2\ns_add_u32 s{T2}, s{T2}, s{sW}\ns_lshl_b32 s{T2}, s{T2}, 8")
        e(f"v_lshlrev_b32 v3, 7, v1\nv_mov_b32 v4, {OOB}\nv_cmp_gt_u32 vcc, 2, v1\nv_cndmask_b32 v3, v4, v3, vcc")
        vq.op(f"buffer_load_dword v255, v3, s[{SRD_J}:{SRD_J+3}], s{T2} offen", "pf")
    e(f"s_and_b32 s{sR}, s{sW}, 1\ns_lshr_b32 s{sC}, s{sW}, 1")
    e(f"s_lshr_b32 s{T2}, s{T0}, 1\ns_lshl_b32 s{T2}, s{T2}, 2\ns_and_b32 s{sRB}, s{T1}, 3\ns_add_u32 s{sRB}, s{sRB}, s{T2}")
    e(f"s_and_b32 s{T0}, s{T0}, 1\ns_lshr_b32 s{T2}, s{T1}, 3\ns_lshl_b32 s{sHG}, s{T0}, 2\ns_add_u32 s{sHG}, s{sHG}, s{T2}\ns_bfe_u32 s{sTY}, s{T1}, 0x10002")
    e(f"s_mul_i32 s{sHS}, s{T0}, 1536\ns_lshl_b32 s{T3}, s{T2}, 7\ns_lshl_b32 s{T3}, s{T3}, s{sTY}\ns_add_u32 s{sHS}, s{sHS}, s{T3}\ns_lshl_b32 s{T3}, s{sTY}, 9\ns_add_u32 s{sHS}, s{sHS}, s{T3}")
    e(f"s_mov_b32 s{sX}, 0\ns_mov_b32 s{sA}, 0\ns_mov_b32 s{sB}, 0\ns_mov_b32 s{sDL}, 0\ns_mov_b32 s{sNX}, {S*D*2}")
    e(f"s_lshl_b32 s{sXW}, s{sW}, 12\ns_mul_i32 s{sWW}, s{sW}, {BLK}\ns_add_u32 s{sWW}, s{sWW}, {XSZ}\ns_mov_b32 s{sHM}, 0\ns_mov_b32 s{sHM+1}, -1")
    e(f"s_lshl_b32 s{T0}, s{sRB}, 7\ns_lshl_b32 s{T1}, s{sW}, 5\ns_add_u32 s{T0}, s{T0}, s{T1}")
    e(f"v_lshrrev_b32 v2, 3, v1\nv_add_u32 v5, s{T0}, v2\nv_mul_u32_u24 v5, 1280, v5\nv_lshrrev_b32 v3, 4, v1\nv_and_b32 v4, 7, v1\nv_xor_b32 v6, v3, v4")
    e(f"v_lshl_add_u32 v{VX}, v6, 4, v5\nv_xor_b32 v6, 4, v6\nv_lshl_add_u32 v7, v6, 4, v5")
    e(f"v_add_u32 v{VX+1}, 9216, v7\nv_add_u32 v{VX+2}, {2*9216}, v{VX}\nv_add_u32 v{VX+3}, {3*9216}, v7")
    e(f"s_lshr_b32 s{T0}, s2, 2\ns_and_b32 s{T1}, s2, 3\ns_cmp_lt_u32 s{T0}, 30\ns_movk_i32 s{T2}, 3072\ns_cselect_b32 s{T2}, 3840, s{T2}\ns_cselect_b32 s{T3}, 0, 30\ns_sub_u32 s{T3}, s{T0}, s{T3}")
    e(f"s_mul_i32 s{T4}, s{T1}, 160\ns_mul_i32 s{T5}, s{sW}, 40\ns_add_u32 s{T4}, s{T4}, s{T5}\ns_mul_i32 s{T4}, s{T4}, s{T2}\ns_lshl_b32 s{T3}, s{T3}, 7\ns_add_u32 s22, s{T4}, s{T3}\ns_lshl_b32 s23, s{T2}, 3")
    e(f"v_lshlrev_b32 v3, 1, v3\nv_xor_b32 v4, v4, v3\nv_mul_u32_u24 v2, s{T2}, v2\nv_lshl_add_u32 v10, v4, 4, v2")
    e(f"s_lshl_b32 s{T3}, s{T0}, 2\ns_add_u32 s{T3}, s{T3}, s{sW}\ns_lshl_b32 s{T3}, s{T3}, 8\ns_lshl_b32 s{T1}, s{T1}, 2\ns_add_u32 s{T3}, s{T3}, s{T1}\ns_add_u32 s{T3}, s{T3}, {CS_OFF}")
    e(f"s_cmp_lt_u32 s2, 216\ns_cselect_b32 s{T3}, s{T3}, {OOB}\nv_add_u32 v2, s{T3}, v{VL16}\nv_mov_b32 v9, {OOB}\nv_cmp_gt_u32 vcc, 16, v1\nv_cndmask_b32 v12, v9, v2, vcc")
    e(f"v_lshrrev_b32 v2, 2, v1\nv_bfe_u32 v3, v1, 3, 2\nv_xor_b32 v3, s{sW}, v3\nv_lshlrev_b32 v3, 5, v3\nv_lshl_add_u32 v3, v2, 7, v3\nv_and_b32 v2, 3, v1\nv_lshl_add_u32 v3, v2, 3, v3\nv_add_u32 v13, {SCR_L}, v3")
    e(f"s_lshl_b32 s{T3}, s2, 3\ns_lshl_b32 s{T4}, s{sW}, 1\ns_add_u32 s{T3}, s{T3}, s{T4}\nv_lshrrev_b32 v2, 5, v1\nv_add_u32 v2, s{T3}, v2\nv_and_b32 v3, 31, v1")
    e(f"v_mul_u32_u24 v4, 1280, v2\nv_lshl_add_u32 v7, v3, 4, v4\nv_cmp_gt_u32 vcc, 16, v3\nv_lshlrev_b32 v2, 3, v2\nv_cndmask_b32 v8, v9, v7, vcc")
    e(f"v_add_u32 v2, {RS_OFF}, v2\nv_cmp_eq_u32 vcc, 0, v3\nv_mov_b32 v6, 0\nv_cndmask_b32 v11, v9, v2, vcc")
    e(f"s_mul_i32 s{T4}, s{sW}, 5120\ns_add_u32 s{T4}, s{T4}, {SCR_L}\ns_mov_b32 s{T5}, {EP_OFF}")
    e("s_waitcnt lgkmcnt(0)")
    stamp(e, cfg, 1)
    srd(e, SRD_X, 4, S * D * 2)
    e(f"s_cmp_lt_u32 s{T0}, 30\ns_cselect_b32 s{SRD_J}, s6, s12\ns_cselect_b32 s{SRD_J+1}, s7, s13\ns_mov_b32 s{T1}, {D*F*2}\ns_cselect_b32 s{SRD_J+2}, {D*1920*2}, s{T1}")
    e(f"s_cmp_lt_u32 s2, 216\ns_cselect_b32 s{SRD_J+2}, s{SRD_J+2}, 0\ns_mov_b32 s{SRD_J+3}, 0x20000")
    X = f"s[{SRD_X}:{SRD_X+3}]"
    vq.op(f"buffer_load_dwordx4 v[16:19], v7, {X}, 0 offen", "job")
    vq.op(f"buffer_load_dwordx4 v[20:23], v7, {X}, 0 offen offset:512", "job")
    vq.op(f"buffer_load_dwordx4 v[24:27], v8, {X}, 0 offen offset:1024", "job")
    for i in range(5):
        e(f"s_add_u32 m0, s{T4}, {1024*i}")
        if i:
            e("s_add_u32 s22, s22, s23")
        vq.op(f"buffer_load_dwordx4 v10, s[{SRD_J}:{SRD_J+3}], s22 offen lds", "job")
    srd(e, SRD_WS, 20, WS_USED)
    vq.op(f"buffer_load_dword v{VEP}, v6, {WS}, s{T5} offen sc1", "job")
    for x in dma_x():
        (vq.op(x, "s0") if x.startswith("buffer") else e(x))
    srd(e, SRD_A, 6, D * 1920 * 2); srd(e, SRD_B, 12, D * F * 2); srd(e, SRD_O, 16, S * D * 2)
    e(f"s_cmp_eq_u32 s{sTY}, 1\ns_cbranch_scc1 L_ty1")
    save = (list(vq.q), vq.done)
    prologue_type(e, 0, cfg, vq)
    e("L_ty1:")
    vq.q, vq.done = list(save[0]), save[1]
    prologue_type(e, 1, cfg, vq)
    e("L_end:\ns_endpgm")
    return e.l


HEADER = open("parallel_sum__linear_attn_block__dense_activation_silu__prompt.s.ref").read().split("; Override")[0]


def build(cfg, verbose=False):
    out = [HEADER.rstrip(), f"; @launch grid=(256,1,1) block=(256,1,1) lds={LDS_SZ}",
           '.amdgcn_target "amdgcn-amd-amdhsa--gfx950"', ".text"]
    log = []
    body = pad_hazards(kernel(cfg), log)
    for x in check_waits(body, "k"):
        print("CHECK", x, file=sys.stderr)
    if verbose:
        print("instructions:", len(body), "pads:", len(log), file=sys.stderr)
        for x in log:
            print("   pad", x, file=sys.stderr)
    out += [f".globl {NAME}", ".p2align 8", f".type {NAME},@function"]
    out += [x if x.endswith(":") else "    " + x for x in body]
    out.append('.section .rodata,"a"')
    out.append(f".p2align 6\n.amdhsa_kernel {NAME}\n  .amdhsa_next_free_vgpr 496\n  .amdhsa_next_free_sgpr 102\n"
               "  .amdhsa_accum_offset 256\n  .amdhsa_group_segment_fixed_size 0\n  .amdhsa_kernarg_size 72\n"
               "  .amdhsa_user_sgpr_count 2\n  .amdhsa_user_sgpr_kernarg_segment_ptr 1\n  .amdhsa_system_sgpr_workgroup_id_x 1\n"
               "  .amdhsa_float_denorm_mode_32 3\n.end_amdhsa_kernel")
    return "\n".join(out) + "\n"


if __name__ == "__main__":
    cfg = Cfg()
    for kv in sys.argv[2:]:
        if kv == "-v":
            continue
        k, v = kv.split("=", 1)
        setattr(cfg, k, v if k.endswith("flags") or k == "drop" else int(v))
    txt = build(cfg, "-v" in sys.argv)
    open(sys.argv[1], "w").write(txt)
```

```python
import os
S, D, F, H, DH = 2048, 640, 1536, 32, 20
HRS = 49152 + int(os.environ.get("HPAD", 0))
ORS = 20480 + int(os.environ.get("OPAD", 0))
HP_OFF = 0
HP_SZ = 128 * 52 * 1024
OP_OFF = HP_OFF + HP_SZ
OP_SZ = 128 * 24 * 1024
WP_OFF = OP_OFF + OP_SZ
WP_SZ = 8 * 68 * 5 * 1024
KV_OFF = WP_OFF + WP_SZ
KVH = 1792
KV_SZ = 32 * KVH
CS_OFF = KV_OFF + 65536
RS_OFF = CS_OFF + 65536
FE_OFF = RS_OFF + 32768
FH_OFF = FE_OFF + 1024
FK_OFF = FH_OFF + 2048
FO_OFF = FK_OFF + 1024
EP_OFF = FO_OFF + 2048 + 2048
ST_OFF = EP_OFF + 4096
WS_USED = ST_OFF + (1 << 17)
```

```python
import sys, struct, re
from asmlib import *
from layout3 import *

NAME = "parallel_sum__linear_attn_block__dense_activation_silu__prompt_kernel"
LOG2E = 0x3FB8AA3B
OOB = 0x40000000


def f2u(x):
    return struct.unpack("<I", struct.pack("<f", x))[0]


class Cfg:
    stamps = 0
    pfcode = 1
    out_flags = ""
    drop = ""
    ev_crit = 30
    ev = 16
    b2_t8 = 10
    b2_t9 = 14
    pro_a = 150
    pro_b = 12
    spin = 0x40000
    points = "0,1,2,3,4,5,6,7,8,9,10,11"
    depth = 3
    p2map = 1
    touch = 1
    ostep = 2
    fod = 3
    nb2 = 0
    nb3 = 12
    nb4 = 3
    rot = 0
    nb1 = 8


STG, XSZ, BLK = 45056, 16384, 7168
SCR_L = 3 * STG
CS_L = SCR_L + 20480
LDS_SZ = CS_L + 1024
RP_L = 2 * STG + XSZ
PK_L, V_L = 0, 25600
WO_L = 51200

SRD_X, SRD_A, SRD_B, SRD_WS, SRD_J, SRD_O = 24, 28, 32, 36, 40, 44
sW, sR, sC, sRB, sHG, sTY, sNON, sIT, sCUR, sX, sA, sB, sDL, sDLT, sXW, sWW, sHS, sLIM = range(48, 66)
T0, T1, T2, T3, T4, T5 = range(66, 72)
sHM, sOK = 72, 74
sH, sO, sWp, sWo, sFH, sFO, sHst, sRB2, sCB, sFE = 4, 8, 12, 13, 14, 15, 16, 17, 18, 19
sKS, sSEG = 22, 23
sK = 3
WS = f"s[{SRD_WS}:{SRD_WS+3}]"

ACC, XF, WF, VX, VW, AX, AA, AB = 16, (128, 144), 160, 188, 192, 199, 201, 203
FL, CSV4, VEP, VJ = 2, 6, 207, 247
SC, DEL = 208, 224
CSR = [228, 232, 236, 240, 244, 188, 192]
VRS, VCS, VCL, VNON, VF0, VFP16, VL16, VFP2 = 248, 249, 250, 251, 252, 253, 254, 255
TU, TE, PKD, PQ = 128, 136, 144, 104
ACC2, HR, WOR, XR = 128, 16, (80, 100), 208


def srd(e, d, base, size):
    e(f"s_mov_b32 s{d}, s{base}\ns_mov_b32 s{d+1}, s{base+1}\ns_mov_b32 s{d+2}, {size}\ns_mov_b32 s{d+3}, 0x20000")


def stamp(e, cfg, name):
    pts = cfg.points.split(",")
    if cfg.stamps and str(name) in pts:
        i = pts.index(str(name))
        e(f"{'s_memtime' if cfg.stamps == 3 else 's_memrealtime'} s[{76+2*i}:{77+2*i}]")


def acc(rho, tau):
    return ACC + 4 * (4 * tau + rho)


def emit_mixed(e, vq, items, tag):
    for x in items:
        vq.op(x, tag) if x.startswith("buffer") else e(x)


ROT = [0]


def dma_x():
    adv = [f"s_add_u32 s{sX}, s{sX}, 128"]
    if ROT[0]:
        adv = [f"s_add_u32 s{sK}, s{sK}, 1\ns_cmp_eq_u32 s{sK}, 10\ns_cselect_b32 s{sK}, 0, s{sK}", f"s_lshl_b32 s{sX}, s{sK}, 7"]
    return [f"s_add_u32 m0, s{sDL}, s{sXW}"] + \
           [f"buffer_load_dwordx4 v{VX+i}, s[{SRD_X}:{SRD_X+3}], s{sX} offen offset:{1024*i} lds" for i in range(4)] + adv


def dma_w(ty):
    nA = 5 if ty == 0 else 3
    it = []
    prev = 0
    for a, b in ([(0, 4), (4, 5), (5, 7)] if ty == 0 else [(0, 3), (3, 7)]):
        it.append(f"s_add_u32 m0, s{sDL}, s{sWW}" if a == 0 else f"s_add_u32 m0, m0, {1024*(a-prev)}")
        prev = a
        for i in range(a, b):
            s, so = (SRD_A, sA) if i < nA else (SRD_B, sB)
            it.append(f"buffer_load_dwordx4 v{VW+i}, s[{s}:{s+3}], s{so} offen offset:{1024*(i-a)} lds")
            if i == nA - 1:
                it.append(f"s_mul_i32 s{sA}, s{sK}, {64*3840}" if ROT[0] else f"s_add_u32 s{sA}, s{sA}, {64*3840}")
    it.append(f"s_mul_i32 s{sB}, s{sK}, {64*3072}" if ROT[0] else f"s_add_u32 s{sB}, s{sB}, {64*3072}")
    return it


def w_offsets(e, ty):
    nA = 5 if ty == 0 else 3
    cpr, magic = (20, 3277) if ty == 0 else (12, 5462)

    def rowperm():
        e("v_bfe_u32 v5, v3, 2, 1\nv_and_b32 v6, 3, v3\nv_lshl_add_u32 v6, v5, 3, v6\nv_bfe_u32 v7, v3, 3, 1\nv_lshl_add_u32 v6, v7, 2, v6")
        e(f"v_add_u32 v6, s{T0}, v6")
    for i in range(nA):
        e(f"v_add_u32 v2, {64*i}, v1\nv_mul_u32_u24 v3, {magic}, v2\nv_lshrrev_b32 v3, 16, v3\nv_mul_u32_u24 v4, {cpr}, v3\nv_sub_u32 v4, v2, v4")
        rowperm()
        e("v_lshlrev_b32 v5, 1, v5\nv_xor_b32 v4, v4, v5\nv_mul_u32_u24 v6, 3840, v6")
        imm = 1024 * (i if i < 4 else i - 4)
        if ty == 0:
            e("v_mul_u32_u24 v7, 52, v4\nv_lshrrev_b32 v7, 8, v7\nv_and_b32 v8, 1, v7\nv_mul_u32_u24 v8, 1200, v8\nv_lshrrev_b32 v7, 1, v7\nv_mul_u32_u24 v7, 80, v7")
            e(f"v_lshl_add_u32 v6, v4, 4, v6\nv_add_u32 v6, v6, v8\nv_sub_u32 v6, v6, v7\nv_add_u32 v6, s{T1}, v6\nv_add_u32 v{VW+i}, {1280-imm & 0xffffffff}, v6")
        else:
            e(f"v_cmp_lt_u32 vcc, 5, v4\nv_lshl_add_u32 v6, v4, 4, v6\nv_add_u32 v6, s{T1}, v6\nv_cndmask_b32 v7, 0, 16, vcc\nv_sub_u32 v6, v6, v7")
            e(f"v_cmp_eq_u32 vcc, 5, v4\nv_cmp_eq_u32 s[{sOK}:{sOK+1}], 11, v4\nv_subrev_u32 v6, {imm}, v6\ns_or_b64 vcc, vcc, s[{sOK}:{sOK+1}]\nv_mov_b32 v7, {OOB}\nv_cndmask_b32 v{VW+i}, v6, v7, vcc")
        yield i
    lg = 3 if ty == 0 else 4
    for i in range(7 - nA):
        e(f"v_add_u32 v2, {64*i}, v1\nv_lshrrev_b32 v3, {lg}, v2\nv_and_b32 v4, {(1<<lg)-1}, v2")
        rowperm()
        e("v_bfe_u32 v5, v3, 1, 2" if ty == 0 else "v_and_b32 v5, 7, v3")
        e(f"v_lshlrev_b32 v5, 1, v5\nv_xor_b32 v4, v4, v5\nv_mul_u32_u24 v6, 3072, v6\nv_lshl_add_u32 v6, v4, 4, v6\nv_add_u32 v6, s{sHS}, v6")
        e(f"v_subrev_u32 v{VW+nA+i}, {1024*i}, v6")
        yield nA + i


def read_addrs(ty):
    pA, pB = (320, 128) if ty == 0 else (192, 256)
    nT, nB = (5, 2) if ty == 0 else (3, 4)
    o = []
    a = lambda s: o.extend(s.split("\n"))
    a("v_bfe_u32 v2, v1, 4, 1\nv_bfe_u32 v3, v1, 2, 2\nv_lshl_add_u32 v3, v2, 2, v3")
    a(f"v_lshrrev_b32 v4, 5, v1\nv_mul_u32_u24 v4, {BLK}, v4\nv_and_b32 v5, 3, v1\nv_lshl_add_u32 v4, v5, 3, v4\nv_add_u32 v4, {XSZ}, v4")
    a(f"v_mul_u32_u24 v5, {pA}, v3\nv_add_u32 v5, v5, v4\ns_mul_i32 s{T2}, s{sC}, {nT}\ns_add_u32 s{T3}, s{T2}, 1")
    a(f"v_xor_b32 v6, s{T2}, v2\nv_lshl_add_u32 v{AA}, v6, 5, v5\nv_xor_b32 v6, s{T3}, v2\nv_lshl_add_u32 v{AA+1}, v6, 5, v5")
    a(f"v_mul_u32_u24 v5, {pB}, v3\nv_add_u32 v5, v5, v4\nv_add_u32 v5, {16*pA}, v5\ns_mul_i32 s{T2}, s{sC}, {nB}")
    a("v_lshrrev_b32 v6, 1, v3" if ty == 0 else "v_mov_b32 v6, v3")
    a(f"v_xor_b32 v6, s{T2}, v6")
    for k in range(nB):
        a(f"v_xor_b32 v7, {k}, v6\nv_lshl_add_u32 v{AB+k}, v7, 5, v5")
    a(f"v_and_b32 v2, 15, v1\nv_bfe_u32 v3, v1, 1, 3\nv_lshrrev_b32 v4, 4, v1\nv_xor_b32 v3, v3, v4\ns_lshl_b32 s{T2}, s{sR}, 13\nv_lshlrev_b32 v5, 7, v2\nv_add_u32 v5, s{T2}, v5")
    a(f"v_lshl_add_u32 v{AX}, v3, 4, v5\nv_xor_b32 v3, 4, v3\nv_lshl_add_u32 v{AX+1}, v3, 4, v5")
    return o


def late_setup(ty, cfg):
    o = []
    a = lambda s: o.extend(s.split("\n"))
    a(f"v_and_b32 v2, 15, v1\ns_lshl_b32 s{T2}, s{sRB}, 7\ns_lshl_b32 s{T3}, s{sR}, 6\ns_add_u32 s{T2}, s{T2}, s{T3}\nv_add_u32 v2, s{T2}, v2\nv_lshlrev_b32 v2, 4, v2\nv_add_u32 v{VRS}, {RS_OFF}, v2")
    a(f"v_cmp_lt_u32 vcc, 111, v0\ns_mul_i32 s{T2}, s{sHG}, 80\ns_lshr_b32 s{T3}, s{sHS}, 1\nv_cndmask_b32 v2, 0, 1, vcc\nv_mul_u32_u24 v3, 112, v2\nv_sub_u32 v3, v0, v3")
    if ty == 0:
        a(f"v_cmp_gt_u32 vcc, 40, v3\nv_mov_b32 v4, 1240\nv_mov_b32 v5, 640\nv_cndmask_b32 v4, v4, v5, vcc\nv_mul_u32_u24 v5, 40, v2\nv_add3_u32 v4, v4, v5, s{T2}")
        a(f"v_cmp_gt_u32 vcc, 80, v3\nv_lshlrev_b32 v5, 5, v2\nv_add_u32 v5, s{T3}, v5\nv_add_u32 v5, 1840, v5")
    else:
        a(f"v_mul_u32_u24 v4, 40, v2\nv_add_u32 v4, s{T2}, v4")
        a(f"v_cmp_gt_u32 vcc, 48, v3\nv_lshlrev_b32 v5, 6, v2\nv_add_u32 v5, s{T3}, v5\nv_add_u32 v5, 1872, v5")
    a(f"v_cndmask_b32 v4, v5, v4, vcc\nv_add_u32 v4, v4, v3\nv_lshlrev_b32 v4, 2, v4\nv_add_u32 v{VCS}, {CS_OFF}, v4")
    a(f"v_lshlrev_b32 v2, 3, v1\nv_mov_b32 v4, {OOB}\nv_cmp_gt_u32 vcc, 16, v1\ns_and_b32 s{T0}, s2, 7\ns_lshr_b32 s{T1}, s2, 3\nv_cndmask_b32 v{VFP16}, v4, v2, vcc")
    if cfg.p2map:
        a(f"v_cmp_gt_u32 vcc, 2, v1\ns_lshl_b32 s{T0}, s{T0}, 2\ns_and_b32 s{T2}, s{T1}, 3\ns_add_u32 s{sRB2}, s{T0}, s{T2}\ns_lshr_b32 s{sCB}, s{T1}, 2")
    else:
        a(f"v_cmp_gt_u32 vcc, 2, v1\ns_lshl_b32 s{T0}, s{sRB}, 1\ns_add_u32 s{sRB2}, s{T0}, s{sTY}\ns_mov_b32 s{sCB}, s{sHG}")
    a(f"v_cndmask_b32 v{VFP2}, v4, v2, vcc\ns_lshl_b32 s{T0}, s{sRB2}, 2")
    for k in range(4):
        a(f"s_xor_b32 s{T1}, s{sW}, {k}\ns_add_u32 s{T1}, s{T1}, s{T0}\ns_mul_i32 s{sH+k}, s{T1}, {HRS}\ns_mul_i32 s{sO+k}, s{T1}, {ORS}")
    a(f"s_mul_i32 s{T1}, s{sW}, 12288\ns_mul_i32 s{T2}, s{sW}, 5120\ns_add_u32 s{T2}, s{T2}, {OP_OFF}")
    for k in range(4):
        a(f"s_add_u32 s{sH+k}, s{sH+k}, s{T1}\ns_add_u32 s{sO+k}, s{sO+k}, s{T2}")
    a(f"s_mul_i32 s{T0}, s{sCB}, {340*1024}\ns_add_u32 s{T0}, s{T0}, {WP_OFF}\ns_mul_i32 s{T1}, s{sW}, {60*1024}\ns_add_u32 s{sWp}, s{T0}, s{T1}")
    a(f"s_mul_i32 s{T1}, s{sW}, {25*1024}\ns_add_u32 s{sWo}, s{T0}, s{T1}\ns_add_u32 s{sWo}, s{sWo}, {240*1024}")
    a(f"s_lshr_b32 s{T0}, s{sRB2}, 1\ns_lshl_b32 s{T0}, s{T0}, 7\ns_lshl_b32 s{T1}, s{sW}, 4\ns_add_u32 s{T0}, s{T0}, s{T1}\ns_add_u32 s{sFH}, s{T0}, {FH_OFF}\ns_add_u32 s{sFO}, s{T0}, {FO_OFF}")
    a(f"s_lshl_b32 s{T0}, s{sRB}, 1\ns_add_u32 s{T0}, s{T0}, s{sR}\ns_mul_i32 s{sHst}, s{T0}, {4*HRS}")
    a(f"s_lshr_b32 s{T1}, s{sHG}, 1\ns_mul_i32 s{T1}, s{T1}, {12*1024}\ns_add_u32 s{sHst}, s{sHst}, s{T1}")
    a(f"s_and_b32 s{T1}, s{sHG}, 1\ns_lshl_b32 s{T1}, s{T1}, 1\ns_add_u32 s{T1}, s{T1}, s{sC}\ns_lshl_b32 s{T1}, s{T1}, {10+ty}\ns_add_u32 s{sHst}, s{sHst}, s{T1}")
    if ty == 0:
        a(f"s_add_u32 s{sHst}, s{sHst}, 8192")
    a(f"s_mov_b32 s{sFE}, {FE_OFF}")
    return o


def wreg(t, tau):
    return (240 + 4 * (tau - 5), "a") if t == 1 and tau >= 5 else (WF + 4 * tau, "v")


def w_reads(ty, t, tau):
    pA, pB = (320, 128) if ty == 0 else (192, 256)
    nT = 5 if ty == 0 else 3
    w, k = wreg(t, tau)
    if tau < nT:
        r, o, p = AA + (tau & 1), 2 * BLK * t + 64 * (tau >> 1), pA
    else:
        r, o, p = AB + tau - nT, 2 * BLK * t, pB
    return [f"ds_read_b64_tr_b16 {vr(w,2,k)}, v{r} offset:{o}", f"ds_read_b64_tr_b16 {vr(w+2,2,k)}, v{r} offset:{o+8*p}"]


def x_reads(t):
    return [f"ds_read_b128 {vr(XF[t]+4*rho,4)}, v{AX+t} offset:{2048*rho}" for rho in range(4)]


def place(fill, items, gaps):
    gi = 0
    for k, x in enumerate(items):
        txt = x[0] if isinstance(x, tuple) else x
        if txt.startswith("buffer"):
            fill[gaps[gi]].append(x)
            gi += 1
        elif "m0" in txt.split(",")[0]:
            fill[gaps[gi] - 1].append(x)
        else:
            fill[gaps[gi - 1] + 1].append(x)


KRD, KC5, KC6, KC7, KC8, KC10 = 196, 197, 198, 199, 200, 201
sKV = 22


def epi_setup(ty):
    o, l = [], []
    a = lambda s: o.extend(s.split("\n"))
    b = lambda s: l.extend(s.split("\n"))
    a(f"s_mul_i32 s{sDL}, s{sW}, 25600\ns_add_u32 s{sDL}, s{sDL}, {WO_L}")
    if ty == 0:
        a(f"v_and_b32 v2, 15, v1\ns_lshl_b32 s{T1}, s{sR}, 6\nv_add_u32 v12, s{T1}, v2\nv_mul_u32_u24 v12, 200, v12\ns_mul_i32 s{T1}, s{sC}, 96\nv_add_u32 v12, s{T1}, v12\nv_lshrrev_b32 v13, 4, v1")
        for tau in range(5):
            a(f"v_add_u32 v9, {4*tau}, v13\nv_mul_u32_u24 v10, 52, v9\nv_lshrrev_b32 v10, 8, v10\nv_lshl_add_u32 v11, v9, 3, v12\nv_lshl_add_u32 v11, v10, 3, v11")
            a(f"v_lshrrev_b32 v10, 1, v10\nv_mul_u32_u24 v10, {V_L-96}, v10\nv_add_u32 v{4+tau}, v10, v11")
        b(f"v_lshlrev_b32 v9, 5, v13\nv_add_u32 v9, v9, v2\nv_mul_u32_u24 v9, 200, v9\ns_mul_i32 s{T1}, s{sW}, 48\nv_add_u32 v9, s{T1}, v9\nv_mov_b32 v10, 0x3f80\nv_mov_b32 v11, 0")
        b(f"ds_write_b64 v9, v[10:11] offset:{V_L+40}\nds_write_b64 v9, v[10:11] offset:{V_L+40+3200}")
        b(f"v_bfe_u32 v2, v1, 2, 2\nv_lshlrev_b32 v2, 3, v2\nv_lshrrev_b32 v3, 5, v1\nv_lshl_add_u32 v2, v3, 1, v2\nv_mul_u32_u24 v2, 200, v2")
        b(f"v_bfe_u32 v12, v1, 4, 1\nv_lshl_add_u32 v2, v12, 5, v2\nv_and_b32 v12, 3, v1\nv_lshl_add_u32 v2, v12, 3, v2")
        b(f"s_lshl_b32 s{T2}, s{sC}, 1\ns_add_u32 s{T2}, s{T2}, s{sR}\ns_mul_i32 s{T1}, s{T2}, 48\nv_add_u32 v{KRD}, s{T1}, v2")
    return o, l


def epi_setup2(ty):
    o = []
    a = lambda s: o.extend(s.split("\n"))
    if ty == 0:
        a(f"v_and_b32 v12, 31, v1\nv_mul_u32_u24 v13, 320, v3\nv_lshl_add_u32 v13, v12, 2, v13\nv_mov_b32 v9, 1792\nv_cmp_gt_u32 vcc, 20, v1")
        a(f"s_lshl_b32 s{T1}, s{sHG}, 2\ns_add_u32 s{T1}, s{T1}, s{T2}\nv_cndmask_b32 v{KC6}, v9, v13, vcc\nv_cmp_gt_u32 vcc, 20, v12")
        a(f"s_mul_i32 s{T1}, s{T1}, {KVH}\ns_add_u32 s{sKV}, s{T1}, {KV_OFF}\nv_cndmask_b32 v{KC5}, v9, v13, vcc\nv_add_u32 v{KC6}, s{sDL}, v{KC6}\nv_add_u32 v{KC5}, s{sDL}, v{KC5}")
        a(f"v_lshlrev_b32 v{KC10}, 2, v1\nv_add_u32 v{KC7}, s{sDL}, v{KC10}\nv_cmp_gt_u32 vcc, 36, v1\nv_mov_b32 v9, {OOB}\ns_nop 0\nv_cndmask_b32 v{KC8}, v9, v{KC10}, vcc")
    else:
        a(f"v_and_b32 v2, 15, v1\nv_mul_u32_u24 v12, 80, v2\nv_lshrrev_b32 v3, 4, v1\nv_lshlrev_b32 v3, 4, v3\nv_mov_b32 v13, {OOB}\nv_and_b32 v14, 3, v1\nv_add_u32 v14, 16, v14")
        a(f"v_cmp_gt_u32 vcc, 4, v2\ns_lshl_b32 s{T2}, s{sC}, 1\ns_nop 0\nv_cndmask_b32 v15, 20, v14, vcc\nv_mul_u32_u24 v15, 80, v15")
        for h in range(2):
            for q in range(2):
                d0 = [[0, 64], [-16, 48]][h][q]
                cond = [[None, "v_cmp_gt_u32 vcc, 16, v1"], ["v_cmp_lt_u32 vcc, 15, v1", "v_cmp_gt_u32 vcc, 32, v1"]][h][q]
                r0, r1 = 4 + 4 * h + q, 4 + 4 * h + 2 + q
                a(f"v_add_u32 v{r0}, {d0 & 0xffffffff}, v3")
                if cond:
                    a(f"{cond}\nv_add_u32 v{r1}, v{r0}, v15\nv_add_u32 v{r0}, v{r0}, v12\nv_cndmask_b32 v{r1}, v13, v{r1}, vcc\nv_cndmask_b32 v{r0}, v13, v{r0}, vcc")
                else:
                    a(f"v_add_u32 v{r1}, v{r0}, v15\nv_add_u32 v{r0}, v{r0}, v12")
        a(f"s_lshl_b32 s{T1}, s{sHG}, 2\ns_add_u32 s{T1}, s{T1}, s{T2}\ns_mul_i32 s{T4}, s{T1}, {KVH}\ns_add_u32 s{T4}, s{T4}, {KV_OFF}\ns_add_u32 s{T5}, s{T4}, {KVH}")
        a(f"s_lshl_b32 s{sX}, s{sHG}, 7\ns_add_u32 s{sX}, s{sX}, {FK_OFF}")
    return o


def spread(fill, items, lo, hi, cap=2):
    g = lo
    items = list(items)
    while items and g <= hi:
        if len(fill[g]) < cap:
            fill[g].append(items.pop(0))
        else:
            g += 1
    return items


def split_w(ty):
    it = dma_w(ty)
    cut = [i for i, x in enumerate(it) if x.startswith("buffer")][1] + 1
    return it[:cut], it[cut:]


def stage_body(e, ty, kind, tag, cfg, vq=None, b2=None):
    nB = 2 if ty == 0 else 4
    fill = [[] for _ in range(56)]
    pre = [[] for _ in range(56)]
    tg = lambda items, t: [(x, t) if x.startswith("buffer") else x for x in items]

    def reads(base, t):
        for tau in range(5):
            a_, b_ = w_reads(ty, t, tau)
            fill[base + 4 * tau + 3].append(a_)
            fill[base + 4 * tau + 4].append(b_)
        for g, x in zip([0, 2, 6, 10], w_reads(ty, t, 5) + w_reads(ty, t, 6)):
            fill[base + g].append(x)
        for k, x in enumerate(x_reads(t)):
            fill[base + 4 * k + 1].append(x)
    reads(0, 1)
    pre[0].append("s_waitcnt lgkmcnt(0)")
    w_head, w_rest = split_w(ty)
    if kind in ("loop", 7):
        place(fill, tg(w_rest, "w"), [14, 17, 21, 23, 26])
    if kind == 7:
        fill[5].append((f"buffer_load_dwordx4 {vr(FL,4)}, v{VL16}, {WS}, s{sFE} offen sc1", "fl"))
    if kind != 9:
        ring = [f"s_mov_b32 s{sDL}, s{sCUR}", f"s_add_u32 s{sCUR}, s{sCUR}, {STG}", f"s_cmp_eq_u32 s{sCUR}, {3*STG}\ns_cselect_b32 s{sCUR}, 0, s{sCUR}",
                f"s_sub_u32 s{sDLT}, s{sCUR}, s{sDL}"]
        for g, x in zip([1, 3, 18, 19], ring):
            fill[g].append(x)
        upd = [AX, AB + nB - 1, AB + nB - 2] + [AA + 1, AA] + [AB + k for k in range(nB - 2)] + [AX + 1]
        for g, r in zip([20, 21, 22, 23, 24, 25, 26, 27], upd):
            fill[g].append(f"v_add_u32 v{r}, s{sDLT}, v{r}")
        pre[28] += [{"loop": "s_waitcnt vmcnt(11) lgkmcnt(0)", 7: ("wait", "w8"), 8: ("wait", "w")}[kind], "s_barrier"]
        reads(28, 0)
    else:
        pre[28] += ["s_waitcnt lgkmcnt(0)", "s_barrier"]
        for k in range(7):
            fill[28 + k].append(f"ds_read_b128 {vr(CSR[k],4)}, v{VCL} offset:{64*k}")
    if kind == "loop":
        place(fill, tg(dma_x(), "x") + tg(w_head, "w"), [42, 45, 46, 49, 52, 54])
        fill[30].append(f"s_add_u32 s{sIT}, s{sIT}, 1")
    if kind == 7:
        chk = [f"v_cmp_eq_u32 s[{sOK}:{sOK+1}], s{sNON}, v{FL}"]
        for k in range(1, 4):
            chk += [f"v_cmp_eq_u32 vcc, s{sNON}, v{FL+k}", f"s_and_b64 s[{sOK}:{sOK+1}], s[{sOK}:{sOK+1}], vcc"]
        chk += [f"s_cmp_eq_u64 s[{sOK}:{sOK+1}], -1", f"s_cbranch_scc0 L_{tag}_slow\nL_{tag}_fast:"]
        fill[45].append(("waitonly", "fl"))
        for g, x in zip(range(46, 55), chk):
            fill[g].append(x)
        fill[55].append(f"s_mov_b32 s{T0}, 13824\ns_mov_b32 s{T1}, {2*13824}")
    if kind == 8:
        fill[0].append(f"s_mov_b32 s{T2}, {3*13824}")
        ld = [f"buffer_load_dword v{CSV4+k}, v{VCS}, {WS}, {['0', 's%d' % T0, 's%d' % T1, 's%d' % T2][k]} offen sc1" for k in range(4)]
        ld += [f"buffer_load_dwordx4 {vr(SC+4*k,4)}, v{VRS}, {WS}, 0 offen offset:{256*k} sc1" for k in range(4)]
        for g, x in zip([1, 3, 5, 7, 9, 14, 17, 18], ld):
            fill[g].append((x, "stat"))
        fill[42].append(f"s_cmp_eq_u32 s2, 0\ns_cselect_b32 s{T1}, {EP_OFF}, s{sLIM}")
        fill[45].append((f"buffer_store_dword v{VNON}, v{VF0}, {WS}, s{T1} offen sc1", "ep"))
    if kind == 9:
        pre[0] = [("wait", "stat")]
        cs = [f"v_add_f32 v{CSV4}, v{CSV4}, v{CSV4+1}", f"v_add_f32 v{CSV4+2}, v{CSV4+2}, v{CSV4+3}", f"v_lshlrev_b32 v2, 2, v0",
              f"v_add_f32 v14, v{CSV4}, v{CSV4+2}", f"v_add_u32 v15, {CS_L}, v2"]
        for g, x in zip([0, 1, 2, 3, 4], cs):
            fill[g].append(x)
        fill[14].append(f"ds_write_b32 v15, v14")
    if kind in (8, 9):
        free = [g for g in range(56) if not any((x[0] if isinstance(x, tuple) else x).startswith(("ds_", "buffer")) for x in fill[g]) and (kind == 9 or g > 18)]
        n = min(cfg.b2_t8 if kind == 8 else cfg.b2_t9, len(free))
        for k in range(n):
            it = b2.pop(0)
            g = free[(k * len(free)) // n]
            fill[g].append((it[0], "b2"))
            if len(it) > 1:
                fill[g].append(it[1])
    rest = []
    if kind == 9:
        sc9 = [f"v_mul_f32 v{DEL+r}, {f2u(1e-6)}, v{SC+4*r+3}" for r in range(4)]
        sc9 += ["v_lshrrev_b32 v3, 4, v1", "v_lshlrev_b32 v3, 4, v3", f"s_mul_i32 s{T0}, s{sC}, 448", f"s_add_u32 s{T0}, s{T0}, {CS_L}", f"v_add_u32 v{VCL}, s{T0}, v3"]
        early, late = epi_setup(ty)
        r1 = spread(fill, sc9 + early, 5, 27)
        assert len(r1) <= len(early)
        rest = spread(fill, r1 + late + epi_setup2(ty), 28, 55)
    for i in range(56):
        t, tau, rho = i // 28, (i % 28) // 4, i % 4
        a = acc(rho, tau)
        w, k = wreg(t, tau)
        for x in pre[i]:
            vq.wait(x[1], "lgkmcnt(0)") if isinstance(x, tuple) else e(x)
        e(f"v_mfma_f32_16x16x32_bf16 {vr(a,4)}, {vr(w,4,k)}, {vr(XF[t]+4*rho,4)}, {vr(a,4)}")
        for x in fill[i]:
            if isinstance(x, tuple) and x[0] == "waitonly":
                vq.wait(x[1])
            elif isinstance(x, tuple):
                e(x[0]) if vq is None else vq.op(x[0], x[1])
            else:
                e(x)
    e.ext(rest)


def two_quads(kind, quads, outs):
    o = []
    prs = [(acc(r, t) + 2 * h, CSR[t] + 2 * h, r, TU + 4 * q + 2 * h, TE + 4 * q + 2 * h) for q, (r, t) in enumerate(quads) for h in range(2)]
    p0 = lambda r: vr(SC + 4 * r, 2)
    p1 = lambda r: vr(SC + 4 * r + 2, 2)
    for a, c, r, u, x in prs:
        o.append(f"v_pk_fma_f32 {vr(u,2)}, {vr(c,2)}, {p0(r)}, {vr(a,2)} op_sel_hi:[1,0,1]")
    if kind == "v":
        for a, c, r, u, x in prs:
            o.append(f"v_pk_mul_f32 {vr(u,2)}, {vr(u,2)}, {p0(r)} op_sel:[0,1]")
    elif kind in ("phi", "mix"):
        for a, c, r, u, x in prs:
            o.append(f"v_pk_mul_f32 {vr(x,2)}, {vr(u,2)}, {p1(r)} op_sel_hi:[1,0]")
        if kind == "mix":
            for a, c, r, u, x in prs:
                o.append(f"v_pk_mul_f32 {vr(a,2)}, {vr(u,2)}, {p0(r)} op_sel:[0,1]")
        for a, c, r, u, x in prs:
            for k in range(2):
                o.append(f"v_exp_f32_e64 v{x+k}, v{x+k} clamp")
                o.append(f"v_max_f32 v{u+k}, v{DEL+r}, v{u+k}")
        for a, c, r, u, x in prs:
            o.append(f"v_pk_fma_f32 {vr(u,2)}, {vr(u,2)}, {p0(r)}, {vr(x,2)} op_sel:[0,1,0]")
        if kind == "mix":
            for a, c, r, u, x in prs:
                for k in range(2):
                    o.append(f"v_cndmask_b32 v{u+k}, v{u+k}, v{a+k}, s[{sHM}:{sHM+1}]")
    else:
        for a, c, r, u, x in prs:
            o.append(f"v_pk_mul_f32 {vr(x,2)}, {vr(u,2)}, {p1(r)} op_sel_hi:[1,0] neg_lo:[0,1] neg_hi:[0,1]")
        for a, c, r, u, x in prs:
            o += [f"v_exp_f32 v{x}, v{x}", f"v_exp_f32 v{x+1}, v{x+1}"]
        for a, c, r, u, x in prs:
            o.append(f"v_pk_fma_f32 {vr(x,2)}, {vr(x,2)}, {p1(r)}, {p1(r)} op_sel:[0,1,1]")
        for a, c, r, u, x in prs:
            o += [f"v_rcp_f32 v{x}, v{x}", f"v_rcp_f32 v{x+1}, v{x+1}"]
        for a, c, r, u, x in prs:
            o.append(f"v_pk_mul_f32 {vr(u,2)}, {vr(u,2)}, {vr(x,2)}")
    for k, (a, c, r, u, x) in enumerate(prs):
        o.append(f"v_cvt_pk_bf16_f32 v{outs[k>>1]+(k&1)}, v{u}, v{u+1}")
    return o


def poll(e, vq, cfg, tag, vaddr, soff, mask, off=0, vdst=2):
    e(f"s_mov_b32 s{T3}, 0")
    e(f"L_{tag}:")
    vq.op(f"buffer_load_dword v{vdst}, v{vaddr}, {WS}, s{soff} offen offset:{off} sc1", tag)
    e(f"s_add_u32 s{T3}, s{T3}, 1")
    vq.drain()
    e(f"v_cmp_eq_u32 vcc, s{sNON}, v{vdst}\ns_nop 0\ns_and_b32 s{T2}, vcc_lo, {mask}\ns_cmp_eq_u32 s{T2}, {mask}\ns_cbranch_scc1 L_{tag}_ok")
    e(f"s_cmp_lt_u32 s{T3}, {cfg.spin}\ns_cbranch_scc1 L_{tag}\nL_{tag}_ok:")


def check_or_poll(e, vq, cfg, tag, vaddr, soff, mask, off, vdst):
    e(f"v_cmp_eq_u32 vcc, s{sNON}, v{vdst}\ns_nop 0\ns_and_b32 s{T2}, vcc_lo, {mask}\ns_cmp_eq_u32 s{T2}, {mask}\ns_cbranch_scc1 L_{tag}_ok")
    keep = (list(vq.q), vq.done)
    poll(e, vq, cfg, tag, vaddr, soff, mask, off, vdst)
    vq.q, vq.done = keep


def flag_store(vq, soffs):
    for so in soffs:
        vq.op(f"buffer_store_dword v{VNON}, v{VF0}, {WS}, s{so} offen sc1", "flag")


def b2_items():
    b2 = []
    for n in range(60):
        it = [f"buffer_load_dwordx4 {ar(4*n,4)}, v{VL16}, {WS}, s{sWp} offen offset:{1024*(n&3)} sc1"]
        if n & 3 == 3:
            it.append(f"s_add_u32 s{sWp}, s{sWp}, 4096")
        b2.append(it)
    return b2


def post_loop(e, ty, cfg, vq, b2):
    tag = f"t{ty}"

    bulk_list = [([], it[0], "b2", it[1:]) for it in b2]
    for n in range(25):
        pre_ = [f"s_add_u32 m0, s{sDL}, {1024*n}", f"s_add_u32 s{sDLT}, s{sWo}, {1024*n}"] if n % 4 == 0 else []
        bulk_list.append((pre_, f"buffer_load_dwordx4 v{VL16}, {WS}, s{sDLT} offen offset:{1024*(n&3)} sc1 lds", "wo", []))
    wo_ok = [ty == 1]

    def bulk(k):
        for _ in range(k):
            if bulk_list and (wo_ok[0] or bulk_list[0][2] == "b2"):
                p, x, t, q = bulk_list.pop(0)
                e.ext(p)
                vq.op(x, t)
                e.ext(q)

    def run(stream, every):
        k = 0
        for x in stream:
            if isinstance(x, tuple):
                vq.op(x[0], x[1])
            else:
                e(x)
                k += 1
                if k % every == 0:
                    bulk(1)

    def h_groups(taus):
        st = []
        n = 0
        for rho in range(4):
            for k in range(0, len(taus), 2):
                out = PKD + 4 * (n & 1)
                st += two_quads("silu", [(rho, taus[k]), (rho, taus[k + 1])], [out, out + 2])
                st.append((f"buffer_store_dwordx4 {vr(out,4)}, v{VL16}, {WS}, s{sHst} offen offset:{512*k} sc1", "hst"))
                n += 1
            st.append(f"s_add_u32 s{sHst}, s{sHst}, {HRS}")
        return st

    ev = cfg.ev
    e("s_waitcnt lgkmcnt(0)")
    if ty == 0:
        st = []
        grp = [("phi", [(r, 0), (r, 1)]) for r in range(4)] + [("mix", [(0, 2), (1, 2)]), ("mix", [(2, 2), (3, 2)])] + [("v", [(r, 3), (r, 4)]) for r in range(4)]
        for n, (kind, qs) in enumerate(grp):
            out = PKD + 4 * (n & 1)
            st += two_quads(kind, qs, [out, out + 2])
            for q, (r, t) in enumerate(qs):
                st.append(f"ds_write_b64 v{4+t}, {vr(out+2*q,2)} offset:{3200*r}")
        run(st, cfg.ev_crit)
        hst = h_groups([5, 6])
        run(hst[:8], 1000)
        e("s_waitcnt lgkmcnt(0)\ns_barrier")
        stamp(e, cfg, "e1")
        body = []
        for m in range(8):
            o = (m >> 1) * 6400 + (m & 1) * 800
            ra = 16 + 8 * m
            body += [f"ds_read_b64_tr_b16 {vr(ra,2)}, v{KRD} offset:{V_L+o}", f"ds_read_b64_tr_b16 {vr(ra+2,2)}, v{KRD} offset:{V_L+o+200}",
                     f"ds_read_b64_tr_b16 {vr(ra+4,2)}, v{KRD} offset:{PK_L+o}", f"ds_read_b64_tr_b16 {vr(ra+6,2)}, v{KRD} offset:{PK_L+o+200}"]
            if m >= 2:
                mm = m - 2
                body.append(f"v_mfma_f32_32x32x16_bf16 v[80:95], {vr(16+8*mm,4)}, {vr(20+8*mm,4)}, {'0' if mm == 0 else 'v[80:95]'}")
        for mm in (6, 7):
            body.append(f"v_mfma_f32_32x32x16_bf16 v[80:95], {vr(16+8*mm,4)}, {vr(20+8*mm,4)}, v[80:95]")
        e.ext(lgkm_waits(body, False, 15))
        run(hst[8:16], 1000)
        for i in range(12):
            off = (8 * (i >> 2) + (i & 3)) * 80
            e(f"ds_write_b32 v{KC5 if i < 9 else KC6}, v{80+i} offset:{off}")
        run(hst[16:22], 1000)
        e("s_waitcnt lgkmcnt(0)")
        for i in range(7):
            e(f"ds_read_b32 v{16+i}, v{KC7} offset:{256*i}")
        run(hst[22:30], 1000)
        e("s_waitcnt lgkmcnt(0)")
        for i in range(7):
            vq.op(f"buffer_atomic_add_f32 v{16+i}, v{KC10 if i < 6 else KC8}, {WS}, s{sKV} offen offset:{256*i}", "atom")
        stamp(e, cfg, "e2")
        wo_ok[0] = True
        run(hst[30:], ev)
        stamp(e, cfg, 4)
        e(f"s_lshl_b32 s{T0}, s{sRB}, 7\ns_lshl_b32 s{T1}, s{sHG}, 3\ns_add_u32 s{T0}, s{T0}, s{T1}\ns_add_u32 s{T0}, s{T0}, {FH_OFF}")
        e(f"s_lshl_b32 s{T1}, s{sHG}, 7\ns_lshl_b32 s{T2}, s{sRB}, 3\ns_add_u32 s{T1}, s{T1}, s{T2}\ns_add_u32 s{T1}, s{T1}, {FK_OFF}")
        bulk(cfg.nb1)
        vq.wait("atom")
        e("s_barrier")
        flag_store(vq, [T1])
        stamp(e, cfg, "e3")
        vq.wait("hst")
        e("s_barrier")
        flag_store(vq, [T0])
        stamp(e, cfg, 5)
        bulk(cfg.nb2)
    else:
        run(h_groups([3, 4, 5, 6]), ev)
        st = []
        for r in range(4):
            st += two_quads("phi", [(r, 0), (r, 1)], [PQ + 6 * r, PQ + 6 * r + 2])
        for r in (0, 2):
            st += two_quads("phi", [(r, 2), (r + 1, 2)], [PQ + 6 * r + 4, PQ + 6 * r + 10])
        run(st, ev)
        stamp(e, cfg, 4)
        e(f"s_lshl_b32 s{T0}, s{sRB}, 7\ns_lshl_b32 s{T1}, s{sHG}, 3\ns_add_u32 s{T0}, s{T0}, s{T1}\ns_add_u32 s{T0}, s{T0}, {FH_OFF+64}")
        vq.wait("hst")
        e("s_barrier")
        flag_store(vq, [T0])
        stamp(e, cfg, 5)
        bulk(cfg.nb3)

    seq = [("h", m) for m in range(12)] + [("o", m) for m in range(5)]
    nsh = 8 if cfg.p2map else 4
    if cfg.touch:
        e(f"v_and_b32 v12, 3, v1\nv_xor_b32 v12, s{sW}, v12\nv_lshrrev_b32 v13, 2, v1\ns_and_b32 s{T0}, s{sCB}, {nsh-1}\ns_lshl_b32 s{T0}, s{T0}, 7")
        if nsh == 8:
            e(f"v_lshlrev_b32 v13, 10, v13\nv_add_u32 v13, s{T0}, v13")
        else:
            e(f"v_lshlrev_b32 v13, 9, v13\nv_add_u32 v13, s{T0}, v13")
        e(f"v_mul_u32_u24 v14, {HRS}, v12\nv_add_u32 v{VRS}, v14, v13\nv_mul_u32_u24 v14, {ORS}, v12\nv_add_u32 v{VCS}, v14, v13")
        e(f"s_lshl_b32 s{T0}, s{sRB2}, 2\ns_mul_i32 s{sA}, s{T0}, {HRS}\ns_mul_i32 s{T1}, s{sW}, 12288\ns_add_u32 s{sA}, s{sA}, s{T1}")
        e(f"s_mul_i32 s{sB}, s{T0}, {ORS}\ns_mul_i32 s{T1}, s{sW}, 5120\ns_add_u32 s{sB}, s{sB}, s{T1}\ns_add_u32 s{sB}, s{sB}, {OP_OFF}")

    def touch(vreg, soff, first, nsteps):
        if not cfg.touch:
            return
        per = 4 * (8 // nsh)
        lanes = nsteps * per
        msk = (1 << lanes) - 1
        e(f"s_add_u32 s{T0}, s{soff}, {1024*first}\ns_mov_b32 exec_lo, {hex(msk & 0xffffffff)}\ns_mov_b32 exec_hi, {hex(msk >> 32)}")
        vq.op(f"buffer_load_dword v{VCL}, v{vreg}, {WS}, s{T0} offen sc1", "touch")
        e("s_mov_b64 exec, -1")

    def o_loads():
        vq.wait("fk")
        check_or_poll(e, vq, cfg, f"{tag}_pk", VFP16, sX, 0xffff, 0, 2)
        stamp(e, cfg, "pk")
        for k in range(8):
            vq.op(f"buffer_load_dwordx4 {vr(208+4*k,4)}, v{4+k}, {WS}, s{T4+(k>>2)} offen sc1", "kv")

    def o_setup():
        e(f"s_lshl_b32 s{T0}, s{sHG}, 1\ns_add_u32 s{T0}, s{T0}, s{sC}\ns_lshr_b32 s{T1}, s{T0}, 2\ns_and_b32 s{T2}, s{T0}, 3\ns_add_u32 s{T0}, s{T0}, s{T1}\ns_lshl_b32 s{T0}, s{T0}, 10")
        e(f"s_mul_i32 s{T1}, s{T1}, 5120\ns_lshl_b32 s{T2}, s{T2}, 8\ns_add_u32 s{T2}, s{T2}, s{T1}\ns_add_u32 s{T2}, s{T2}, 4096")
        e(f"s_lshl_b32 s{T1}, s{sRB}, 1\ns_add_u32 s{T1}, s{T1}, s{sR}\ns_mul_i32 s{T1}, s{T1}, {4*ORS}\ns_add_u32 s{T1}, s{T1}, {OP_OFF}\ns_add_u32 s{sKS}, s{T1}, s{T0}\ns_add_u32 s{sSEG}, s{T1}, s{T2}")
        e(f"v_cmp_gt_u32 vcc, 16, v1\nv_mov_b32 v15, {OOB}\ns_nop 0\nv_cndmask_b32 v15, v15, v{VL16}, vcc")

    def o_compute():
        KT = 80
        vq.wait("kv")
        stamp(e, cfg, "kv")
        for k in range(8):
            for q in range(2):
                e(f"v_cvt_pk_bf16_f32 v{KT+2*k+q}, v{208+4*k+2*q}, v{208+4*k+2*q+1}")
        N = lambda h, E, r: 208 + 16 * (r & 1) + 8 * h + 4 * E

        def mf(r):
            return [f"v_mfma_f32_16x16x32_bf16 {vr(N(h,E,r),4)}, {vr(KT+8*h+4*E,4)}, {vr(PQ+6*r+2*h,4)}, 0" for E in (1, 0) for h in range(2)]

        def den(r):
            d = 96 + 4 * (r & 1)
            o = [f"v_mov_b32 v{d+2*h+k}, v{N(h,1,r)}" for h in range(2) for k in range(2)]
            o += [f"v_permlane16_swap_b32 v{d+2*h}, v{d+2*h+1}" for h in range(2)]
            o += [f"v_add_f32 v{d+2*h}, {f2u(1e-6)}, v{d+2*h+1}" for h in range(2)]
            return o + [f"v_rcp_f32 v{d+2*h}, v{d+2*h}" for h in range(2)]

        def out(r):
            d, ob = 96 + 4 * (r & 1), (4 if (r & 1) else 240)
            for E in range(2):
                for h in range(2):
                    for p in range(2):
                        n0 = N(h, E, r) + 2 * p
                        e(f"v_pk_mul_f32 {vr(n0,2)}, {vr(n0,2)}, {vr(d+2*h,2)} op_sel_hi:[1,0]")
                for h in range(2):
                    for p in range(2):
                        e(f"v_cvt_pk_bf16_f32 v{ob+4*E+2*h+p}, v{N(h,E,r)+2*p}, v{N(h,E,r)+2*p+1}")
                vq.op(f"buffer_store_dwordx4 {vr(ob+4*E,4)}, v{15 if E else VL16}, {WS}, s{sSEG if E else sKS} offen sc1", "ost")
            e(f"s_add_u32 s{sKS}, s{sKS}, {ORS}\ns_add_u32 s{sSEG}, s{sSEG}, {ORS}")
        e.ext(mf(0) + mf(1))
        for x, y in zip(den(0), den(1)):
            e(x); e(y)
        out(0); e.ext(mf(2)); out(1); e.ext(mf(3)); e.ext(den(2)); e.ext(den(3)); out(2); out(3)

    dp = cfg.depth
    nb2_before = 0

    def loads(n):
        kind, m = seq[n]
        base = sH if kind == "h" else sO
        it = [(f"buffer_load_dwordx4 {vr(HR+16*(n&3)+4*r,4)}, v{VL16}, {WS}, s{base+r} offen offset:{1024*(m&3)} sc1", n) for r in range(4)]
        if (m & 3) == 3:
            it += [f"s_add_u32 s{base+r}, s{base+r}, 4096" for r in range(4)]
        return it

    def step(n, extra):
        kind, m = seq[n]
        if kind == "h":
            idx = [i for i, t in enumerate(vq.q) if t == "b2"]
            k = 5 * m + 5 - nb2_before
            assert k <= len(idx), ("w2 fragments not issued yet", n)
            if k > 0:
                vq.q[idx[k - 1]] = "b2need"
                vq.wait("b2need")
                vq.q[idx[k - 1]] = "b2"
        vq.wait(n)
        if n == 0:
            stamp(e, cfg, 7)
        if kind == "o":
            e(f"s_waitcnt lgkmcnt({5 if n < 16 else 0})")
        stamp(e, cfg, f"k{n}")
        extra = list(extra)
        nv = max(1, sum(isinstance(x, tuple) for x in extra))
        gap = max(1, 18 // nv)
        i = 0
        for r in ((1, 2, 3, 0) if n == 16 else range(4)):
            for c in range(5):
                if n == 16 and i >= 8:
                    kk = i - 8
                    e(f"ds_write_b128 v5, {vr(ACC2+20+4*kk,4)} offset:{1024*kk}")
                a_ = ACC2 + 4 * (5 * r + c)
                wb = ar(20 * m + 4 * c, 4) if kind == "h" else vr(WOR[m & 1] + 4 * c, 4)
                e(f"v_mfma_f32_16x16x32_bf16 {vr(a_,4)}, {wb}, {vr(HR+16*(n&3)+4*r,4)}, {'0' if n == 0 else vr(a_,4)}")
                if i % gap == 0:
                    while extra and not isinstance(extra[0], tuple):
                        e(extra.pop(0))
                    if extra:
                        x = extra.pop(0)
                        vq.op(x[0], x[1])
                elif extra and not isinstance(extra[0], tuple):
                    e(extra.pop(0))
                i += 1
        run(extra, 1000)

    def wo_items(k):
        it = []
        for _ in range(k):
            if bulk_list:
                p, x, t, q = bulk_list.pop(0)
                it += p + [(x, t)] + q
        return it

    def wo_reads(u):
        return [f"ds_read_b128 {vr(WOR[u&1]+4*c,4)}, v5 offset:{5120*u+1024*c}" for c in range(5)]

    fin = (f"v_add_u32 v5, s{sDL}, v{VL16}\ns_lshl_b32 s{T0}, s{sRB2}, 6\ns_lshl_b32 s{T2}, s{sW}, 4\ns_add_u32 s{T0}, s{T0}, s{T2}\n"
           f"v_and_b32 v6, 15, v1\nv_add_u32 v6, s{T0}, v6\nv_mul_u32_u24 v6, 1280, v6\nv_lshrrev_b32 v7, 4, v1\nv_lshl_add_u32 v6, v7, 3, v6\ns_mul_i32 s{T0}, s{sCB}, 160\nv_add_u32 v10, s{T0}, v6").split("\n")
    red = []
    for k in range(1, 4):
        red += f"s_xor_b32 s{T0}, s{sW}, {k}\ns_mul_i32 s{T0}, s{T0}, 25600\ns_add_u32 s{T0}, s{T0}, {WO_L+5120*(k-1)}\nv_add_u32 v{5+k}, s{T0}, v{VL16}".split("\n")
    xl = [(f"buffer_load_dwordx2 {vr(XR+2*c,2)}, v10, s[{SRD_X}:{SRD_X+3}], 0 offen offset:{32*c}", "x") for c in range(5)]
    if ty == 1:
        o_setup()
    vq.op(f"buffer_load_dword v3, v{VFP2}, {WS}, s{sFH} offen offset:64 sc1", "f1")
    bulk(cfg.nb4)
    vq.wait("f1")
    check_or_poll(e, vq, cfg, f"{tag}_ph", VFP2, sFH, 3, 64, 3)
    stamp(e, cfg, 6)
    assert all(x[2] == "wo" for x in bulk_list) or len(bulk_list) - 25 <= 30
    for n in range(dp):
        run(loads(n), 1000)
    fk = (f"buffer_load_dword v2, v{VFP16}, {WS}, s{sX} offen sc1", "fk")
    if ty == 1 and cfg.ostep == 0:
        vq.op(*fk)
    touch(VRS, sA, dp, 8 - dp)
    nfo = 12 - dp
    for n in range(nfo):
        stamp(e, cfg, f"n{n}")
        if ty == 1 and n == cfg.ostep:
            o_loads()
        if ty == 1 and n == cfg.ostep + 1:
            o_compute()
        if ty == 1 and n == cfg.ostep + cfg.fod:
            stamp(e, cfg, "o1")
            vq.wait("ost")
            stamp(e, cfg, "o2")
            e(f"s_barrier\ns_lshl_b32 s{T2}, s{sRB}, 7\ns_lshl_b32 s{T3}, s{sHG}, 3\ns_add_u32 s{T2}, s{T2}, s{T3}\ns_add_u32 s{T2}, s{T2}, {FO_OFF}")
            flag_store(vq, [T2])
        if n == 8 - dp:
            vq.wait("f0")
            check_or_poll(e, vq, cfg, f"{tag}_p0", VFP2, sFH, 3, 0, 3)
            touch(VRS, sA, 8, 4)
        stamp(e, cfg, f"m{n}")
        extra = loads(n + dp) + wo_items(2 if n < nfo - 1 else 25)
        if ty == 1 and n == cfg.ostep - 1:
            extra.insert(0, fk)
        if n == 6 - dp:
            extra.append((f"buffer_load_dword v3, v{VFP2}, {WS}, s{sFH} offen sc1", "f0"))
        if n == nfo - 2:
            extra.append((f"buffer_load_dword v3, v{VFP2}, {WS}, s{sFO} offen sc1", "fo"))
        if n == nfo - 1:
            extra += fin
        step(n, extra)
    stamp(e, cfg, "n9")
    vq.wait("fo")
    e(f"v_cmp_eq_u32 vcc, s{sNON}, v3\ns_nop 0\ns_and_b32 s{T2}, vcc_lo, 3\ns_cmp_eq_u32 s{T2}, 3\ns_cbranch_scc0 L_{tag}_olate")
    keep = (list(vq.q), vq.done)
    touch(VCS, sB, 0, 5)
    for n in range(nfo, 12):
        if n == 11:
            vq.wait("wo")
        step(n, loads(n + dp) + (wo_reads(0) if n == 11 else []))
    e(f"L_{tag}_ojoin:")
    stamp(e, cfg, 8)
    for n in range(12, 17):
        if n < 16:
            e.ext(wo_reads(n - 11))
        step(n, (loads(n + dp) if n + dp < 17 else []) + (xl if n == 13 else []) + (red if n == 15 else []))
    main = (list(vq.q), vq.done)
    late = Em()
    e_main, e.l, hold = e.l, late.l, None
    e(f"L_{tag}_olate:")
    vq.q, vq.done = keep
    for n in range(nfo, 12):
        if n == 11:
            vq.wait("wo")
        step(n, wo_reads(0) if n == 11 else [])
    poll(e, vq, cfg, f"{tag}_po", VFP2, sFO, 3, 0, 3)
    for n in range(12, 12 + dp):
        run(loads(n), 1000)
    e(f"s_branch L_{tag}_ojoin")
    late_code = e.l
    e.l = e_main
    vq.q, vq.done = main
    stamp(e, cfg, 9)
    for k in range(12, 15):
        e(f"ds_write_b128 v5, {vr(ACC2+20+4*k,4)} offset:{1024*k}")
    vq.wait("x")
    for c in range(5):
        a_, xr = ACC2 + 4 * c, XR + 2 * c
        e(f"v_lshlrev_b32 v12, 16, v{xr}\nv_and_b32 v13, 0xffff0000, v{xr}\nv_lshlrev_b32 v14, 16, v{xr+1}\nv_and_b32 v15, 0xffff0000, v{xr+1}")
        for h in range(2):
            e(f"v_pk_add_f32 {vr(a_+2*h,2)}, {vr(a_+2*h,2)}, {vr(12+2*h,2)}")
    e("s_waitcnt lgkmcnt(0)\ns_barrier")
    for c in range(5):
        for k in range(3):
            e(f"ds_read_b128 {vr(16+12*c+4*k,4)}, v{6+k} offset:{1024*c}")
    for c in range(5):
        b, a_ = 16 + 12 * c, ACC2 + 4 * c
        e(f"s_waitcnt lgkmcnt({12-3*c})")
        for h in range(2):
            e(f"v_pk_add_f32 {vr(b+2*h,2)}, {vr(b+2*h,2)}, {vr(b+4+2*h,2)}")
        for h in range(2):
            e(f"v_pk_add_f32 {vr(a_+2*h,2)}, {vr(a_+2*h,2)}, {vr(b+8+2*h,2)}")
        for h in range(2):
            e(f"v_pk_add_f32 {vr(a_+2*h,2)}, {vr(a_+2*h,2)}, {vr(b+2*h,2)}")
        e(f"v_cvt_pk_bf16_f32 v{b}, v{a_}, v{a_+1}\nv_cvt_pk_bf16_f32 v{b+1}, v{a_+2}, v{a_+3}")
        vq.op(f"buffer_store_dwordx2 {vr(b,2)}, v10, s[{SRD_O}:{SRD_O+3}], 0 offen offset:{32*c} {cfg.out_flags}", "out")
    stamp(e, cfg, 10)
    if cfg.stamps:
        e("s_waitcnt vmcnt(0) lgkmcnt(0)")
        stamp(e, cfg, 11)
        e("s_waitcnt lgkmcnt(0)")
        e(f"s_lshl_b32 s3, s2, 2\ns_add_u32 s3, s3, s{sW}\ns_lshl_b32 s3, s3, 6\ns_add_u32 s3, s3, {ST_OFF}\nv_mov_b32 v2, 0")
        for i in range(12):
            e(f"v_writelane_b32 v2, s{76+2*i}, {i}")
        e(f"v_lshlrev_b32 v3, 2, v1\nv_mov_b32 v4, {OOB}\nv_cmp_gt_u32 vcc, 16, v1\nv_cndmask_b32 v3, v4, v3, vcc\nbuffer_store_dword v2, v3, {WS}, s3 offen")
        if cfg.stamps == 2:
            e(f"s_not_b32 s3, s76\nv_writelane_b32 v2, s3, 12\ns_load_dwordx2 s[4:5], s[0:1], 56\ns_waitcnt lgkmcnt(0)\ns_mov_b32 s6, 256\ns_mov_b32 s7, 0x20000")
            e("buffer_atomic_umax v2, v3, s[4:7], 0 offen")
    e("s_endpgm")
    e.ext(late_code)
    e(f"L_{tag}_slow:\ns_mov_b32 s{T3}, 0\nL_{tag}_slow2:")
    e(f"buffer_load_dwordx4 {vr(FL,4)}, v{VL16}, {WS}, s{sFE} offen sc1\ns_add_u32 s{T3}, s{T3}, 1\ns_waitcnt vmcnt(0)")
    e(f"v_cmp_eq_u32 s[{sOK}:{sOK+1}], s{sNON}, v{FL}")
    for k in range(1, 4):
        e(f"v_cmp_eq_u32 vcc, s{sNON}, v{FL+k}\ns_nop 0\ns_and_b64 s[{sOK}:{sOK+1}], s[{sOK}:{sOK+1}], vcc")
    e(f"s_cmp_eq_u64 s[{sOK}:{sOK+1}], -1\ns_cbranch_scc1 L_{tag}_fast\ns_cmp_lt_u32 s{T3}, {cfg.spin}\ns_cbranch_scc1 L_{tag}_slow2\ns_branch L_{tag}_fast")


def main_type(e, ty, cfg, vq):
    tag = f"t{ty}"
    def weave(work, items, tagv, first, every):
        k = 0
        for i, x in enumerate(work):
            e(x)
            if i >= first and (i - first) % every == 0 and k < len(items):
                while k < len(items) and not items[k].startswith("buffer"):
                    e(items[k]); k += 1
                if k < len(items):
                    vq.op(items[k], tagv); k += 1
        emit_mixed(e, vq, items[k:], tagv)

    tmp = Em()
    tmp(f"s_lshl_b32 s{T0}, s{sW}, 4\ns_mul_i32 s{T1}, s{sHG}, 160")
    for _ in w_offsets(tmp, ty):
        pass
    work = tmp.l + read_addrs(ty) + [f"v_mov_b64 {vr(r,2)}, 0" for r in range(ACC + 16, ACC + 112, 2)]
    if ty == 0:
        work += late_setup(ty, cfg)
    weave(work, dma_x() + dma_w(ty), "s0", max(cfg.pro_a - 4 * cfg.pro_b, len(tmp.l) - 4 * cfg.pro_b), cfg.pro_b)
    e(f"s_mov_b32 s{sDL}, {STG}")
    if ty == 1:
        e(f"s_lshl_b32 s{T0}, s{sRB}, 3\ns_add_u32 s{T0}, s{T0}, s{sHG}\ns_mul_i32 s{T0}, s{T0}, 3\ns_add_u32 s{T0}, s{T0}, s{sW}")
        e(f"s_cmp_eq_u32 s{sW}, 3\ns_cselect_b32 s{T0}, 340, s{T0}\ns_min_u32 s{T0}, s{T0}, 340")
        e(f"s_mul_i32 s{sKS}, s{T0}, 52429\ns_lshr_b32 s{sKS}, s{sKS}, 18\ns_mul_i32 s{T1}, s{sKS}, 5\ns_sub_u32 s{sSEG}, s{T0}, s{T1}")
        e(f"s_sub_u32 s{T1}, s{sKS}, 48\ns_mul_i32 s{T2}, s{T1}, 52\ns_lshr_b32 s{T2}, s{T2}, 8\ns_mul_i32 s{T3}, s{T2}, 5\ns_sub_u32 s{T3}, s{T1}, s{T3}")
        e(f"s_mul_i32 s{T2}, s{T2}, 160\ns_mul_i32 s{T4}, s{T3}, 40\ns_cmp_eq_u32 s{T3}, 4\ns_cselect_b32 s{T4}, 16, s{T4}\ns_mov_b32 s10, 20\ns_cselect_b32 s11, 40, 4\ns_add_u32 s{T2}, s{T2}, s{T4}")
        e(f"s_mul_i32 s{T1}, s{sKS}, 43\ns_lshr_b32 s{T1}, s{T1}, 9\ns_mul_i32 s{T3}, s{T1}, 12\ns_sub_u32 s{T3}, s{sKS}, s{T3}")
        e(f"s_and_b32 s{T4}, s{T1}, 1\ns_lshr_b32 s{T1}, s{T1}, 1\ns_mul_i32 s{T1}, s{T1}, 768\ns_lshl_b32 s{T5}, s{T4}, 7\ns_sub_u32 s{T5}, s{T5}, 256")
        e(f"s_lshl_b32 s{T4}, s{T4}, 8\ns_add_u32 s{T4}, s{T4}, 256\ns_cmp_lt_u32 s{T3}, 8\ns_cselect_b32 s{T4}, s{T4}, s{T5}\ns_lshl_b32 s{T3}, s{T3}, 5\ns_add_u32 s{T4}, s{T4}, s{T3}\ns_add_u32 s{T4}, s{T4}, s{T1}")
        e(f"s_cmp_ge_u32 s{sKS}, 48\ns_cselect_b32 s{T2}, s{T2}, s{T4}\ns_cselect_b32 s10, s10, 16\ns_cselect_b32 s11, s11, 4")
        e(f"s_cselect_b32 s{SRD_J}, s8, s14\ns_cselect_b32 s{SRD_J+1}, s9, s15\ns_mov_b32 s{T4}, {1536*1280}\ns_cselect_b32 s{SRD_J+2}, {640*1280}, s{T4}")
        e(f"s_lshl_b32 s{T3}, s{sW}, 13\ns_add_u32 s{T3}, s{T3}, {RP_L}\ns_add_u32 s{T1}, s{sXW}, {2*STG}")
        e(f"s_cmp_eq_u32 s{T0}, 340\ns_cselect_b32 s{SRD_J+2}, 0, s{SRD_J+2}\ns_cselect_b32 s{T5}, {OOB}, 0\ns_cselect_b32 s{T1}, s{T1}, s{T3}\ns_cselect_b32 s{T3}, 0, 1024")
        e(f"s_mul_i32 s{T2}, s{T2}, 1280\ns_lshl_b32 s{T4}, s{sSEG}, 8\ns_add_u32 s{T2}, s{T2}, s{T4}\ns_mul_i32 s10, s10, 1280\ns_mul_i32 s11, s11, 1280")
        e(f"s_mov_b32 m0, s{T1}\nv_add_u32 v15, s{T5}, v{VL16}")
        e("v_lshrrev_b32 v2, 4, v1\nv_and_b32 v3, 15, v1\nv_lshlrev_b32 v4, 1, v2\nv_xor_b32 v3, v3, v4\nv_mul_u32_u24 v2, 1280, v2\nv_lshl_add_u32 v8, v3, 4, v2\nv_xor_b32 v3, 8, v3\nv_lshl_add_u32 v9, v3, 4, v2")
        for i in range(8):
            if i == 4:
                e(f"s_add_u32 s{T2}, s{T2}, s10")
            if i:
                e(f"s_add_u32 m0, m0, s{T3}")
            e(f"s_mul_i32 s{T0}, s11, {i&3}\ns_add_u32 s{T0}, s{T0}, s{T2}")
            vq.op(f"buffer_load_dwordx4 v{8+(i&1)}, s[{SRD_J}:{SRD_J+3}], s{T0} offen lds", "rp")
        e("v_bfe_u32 v2, v1, 4, 1\nv_bfe_u32 v3, v1, 2, 2\nv_lshl_add_u32 v2, v2, 2, v3\nv_lshrrev_b32 v3, 4, v1\nv_bfe_u32 v4, v1, 2, 2\nv_lshl_add_u32 v3, v3, 2, v4")
        e(f"v_lshlrev_b32 v2, 5, v2\nv_lshl_add_u32 v2, v3, 8, v2\nv_and_b32 v3, 3, v1\nv_lshl_add_u32 v2, v3, 3, v2\nv_add_u32 v14, s{T1}, v2")
        for c_ in range(8):
            e(f"s_lshl_b32 s{T0}, s{sSEG}, 3\ns_add_u32 s{T0}, s{T0}, {c_}\ns_mul_i32 s{T1}, s{T0}, 52429\ns_lshr_b32 s{T1}, s{T1}, 18")
            e(f"s_mul_i32 s{T2}, s{T1}, 335\ns_add_u32 s{T2}, s{T2}, s{T0}\ns_mul_i32 s{T1}, s{sKS}, 5\ns_add_u32 s{T2}, s{T2}, s{T1}\ns_lshl_b32 s{T2}, s{T2}, 10\ns_add_u32 s{4+c_}, s{T2}, {WP_OFF}")
    stamp(e, cfg, "j0")
    vq.wait("job")
    e("s_barrier")
    stamp(e, cfg, "j1")
    for m in range(5):
        e(f"ds_read_b64_tr_b16 {vr(128+4*m,2)}, v13 offset:{4096*m}\nds_read_b64_tr_b16 {vr(130+4*m,2)}, v13 offset:{4096*m+2048}")
    real, e.l = e.l, []
    e("v_mov_b32 v28, 0\nv_mov_b32 v29, 0\nv_mov_b32 v30, 0\nv_mov_b32 v31, 0")
    for k in range(4):
        e(f"v_mov_b32 v{148+k}, 0x3f803f80")
    for k in range(12):
        e(f"v_dot2_f32_bf16 v{28+(k&1)}, v{16+k}, v148, v{28+(k&1)}\nv_dot2_f32_bf16 v{30+(k&1)}, v{16+k}, v{16+k}, v{30+(k&1)}")
    e("s_waitcnt lgkmcnt(0)")
    for m in range(5):
        e(f"v_mfma_f32_16x16x32_bf16 v[152:155], v[148:151], {vr(128+4*m,4)}, {'0' if m == 0 else 'v[152:155]'}")
    e(f"v_readfirstlane_b32 s{sNON}, v{VEP}\nv_add_f32 v28, v28, v29\nv_add_f32 v30, v30, v31")
    e(f"s_mul_i32 s{sNON}, s{sNON}, 0x9E3779B1\ns_add_u32 s{sNON}, s{sNON}, 0x7F4A7C15")
    for k, sh in enumerate((8, 4, 2, 1)):
        e(f"v_add_f32_dpp v28, v28, v28 row_ror:{sh} row_mask:0xf bank_mask:0xf\nv_add_f32_dpp v30, v30, v30 row_ror:{sh} row_mask:0xf bank_mask:0xf")
        e(f"v_mov_b64 {vr(16+2*k,2)}, 0")
    e("v_mov_b32 v29, v28\nv_mov_b32 v31, v30\nv_mov_b64 v[24:25], 0\nv_permlane16_swap_b32 v28, v29\nv_permlane16_swap_b32 v30, v31\nv_add_f32 v28, v28, v29\nv_add_f32 v30, v30, v31")
    c = f2u(1.0 / 640)
    e(f"v_mul_f32 v156, {f2u(-1.0 / 640)}, v28\nv_mul_f32 v30, {c}, v30\nv_fma_f32 v30, -v156, v156, v30\nv_max_f32 v30, 0, v30\nv_add_f32 v30, {f2u(1e-5)}, v30\nv_rsq_f32 v157, v30")
    e(f"ds_write_b32 v12, v152\nv_mul_f32 v158, {LOG2E}, v157\nv_mul_f32 v159, v30, v157\nds_write_b128 v11, v[156:159]")
    e(f"v_cmp_eq_u32 vcc, 0, v0\nv_mov_b32 v{VF0}, {OOB}\nv_mov_b32 v{VNON}, s{sNON}\nv_cndmask_b32 v{VF0}, v{VF0}, 0, vcc")
    e("v_mov_b64 v[26:27], 0\nv_mov_b64 v[28:29], 0\nv_mov_b64 v[30:31], 0")
    work, e.l = e.l, real
    items = dma_w(ty)
    cut = [i for i, x in enumerate(items) if x.startswith("buffer")][4] + 1
    weave(work, dma_x() + items[:cut], "s1", 2, 9)
    if ty == 0:
        e(f"s_cmp_eq_u32 s{sRB}, 0\ns_cselect_b32 s{T0}, 0, {OOB}\ns_mul_i32 s{T1}, s{sHG}, {4*KVH}\ns_add_u32 s{T1}, s{T1}, {KV_OFF}")
        e(f"v_lshlrev_b32 v2, 4, v0\nv_add_u32 v2, s{T0}, v2\nv_add_u32 v3, 4096, v2\nv_mov_b32 v4, {OOB}\nv_cmp_gt_u32 vcc, 192, v0\ns_nop 0\nv_cndmask_b32 v3, v4, v3, vcc")
    if ty == 0:
        vq.op(f"buffer_store_dwordx4 v[48:51], v2, {WS}, s{T1} offen sc1", "st")
        vq.op(f"buffer_store_dwordx4 v[48:51], v3, {WS}, s{T1} offen sc1", "st")
    else:
        vq.wait("rp")
        for c_ in range(8):
            e(f"v_xor_b32 v2, {32*c_}, v14")
            e(f"ds_read_b64_tr_b16 {vr(208+4*c_,2)}, v2\nds_read_b64_tr_b16 {vr(210+4*c_,2)}, v2 offset:4096")
        for c_ in range(8):
            e(f"s_waitcnt lgkmcnt({14-2*c_})")
            vq.op(f"buffer_store_dwordx4 {vr(208+4*c_,4)}, v15, {WS}, s{4+c_} offen sc1", "st")
    stamp(e, cfg, "j2")
    vq.wait("s0", "lgkmcnt(0)")
    e("s_barrier")
    stamp(e, cfg, 2)
    e(f"v_add_u32 v2, {CS_L}, v{VL16}\nds_read_b128 v[4:7], v2")
    first = x_reads(0) + sum([w_reads(ty, 0, t) for t in range(7)], [])
    e.ext(first[:6])
    first = first[6:]
    e("s_waitcnt lgkmcnt(6)")
    vq.op(f"buffer_store_dwordx4 v[4:7], v{VJ}, {WS}, 0 offen sc1", "st")
    weave(first + (late_setup(ty, cfg) if ty == 1 else []), items[cut:] + [f"s_mov_b32 s{sDL}, {2*STG}"] + dma_x() + split_w(ty)[0], "s1", 3, 2 if ty == 0 else 12)
    e(f"s_mov_b32 s{sCUR}, 0\ns_mov_b32 s{sIT}, 0\ns_mov_b32 s{sLIM}, 2")
    stamp(e, cfg, "ls")
    n0 = len(e.l)
    e(f"L_{tag}_loop:")
    stage_body(e, ty, "loop", tag, cfg)
    e(f"s_cmp_lt_u32 s{sIT}, s{sLIM}\ns_cbranch_scc1 L_{tag}_loop")
    e(f"s_cmp_eq_u32 s{sLIM}, 2\ns_cbranch_scc1 L_{tag}_eflag\ns_mov_b32 s{sLIM}, {OOB}")
    vq = VmQ(e)
    vq.q = ["w8"] * 5 + ["x"] * 6
    b2 = b2_items()
    for kind in (7, 8, 9):
        stamp(e, cfg, f"s{kind}")
        stage_body(e, ty, kind, tag, cfg, vq, b2)
    for d in cfg.drop.split(","):
        if d.startswith("lp:"):
            e.l[n0:] = [x for x in e.l[n0:] if not re.search(d[3:], x)]
    stamp(e, cfg, 3)
    n0 = len(e.l)
    post_loop(e, ty, cfg, vq, b2)
    for d in cfg.drop.split(","):
        if d.startswith("ep:"):
            e.l[n0:] = [x for x in e.l[n0:] if not re.search(d[3:], x)]
    e(f"L_{tag}_eflag:\ns_lshl_b32 s{T0}, s2, 2\ns_add_u32 s{T0}, s{T0}, {FE_OFF}\ns_mov_b32 s{sLIM}, 7")
    e(f"buffer_store_dword v{VNON}, v{VF0}, {WS}, s{T0} offen sc1\ns_branch L_{tag}_loop")


def kernel(cfg):
    ROT[0] = cfg.rot
    e = Em()
    vq = VmQ(e)
    e(f"{NAME}:")
    stamp(e, cfg, 0)
    e("s_cmp_ge_u32 s2, 256\ns_cbranch_scc1 L_end")
    e("s_load_dwordx16 s[4:19], s[0:1], 0\ns_load_dwordx2 s[20:21], s[0:1], 64")
    e(f"v_and_b32 v1, 63, v0\nv_lshrrev_b32 v2, 6, v0\nv_lshlrev_b32 v{VL16}, 4, v1\nv_readfirstlane_b32 s{sW}, v2")
    e(f"s_and_b32 s{T0}, s2, 7\ns_lshr_b32 s{T1}, s2, 3")
    if cfg.pfcode:
        e(f"s_getpc_b64 s[{SRD_J}:{SRD_J+1}]\nL_pc:\ns_sub_u32 s{SRD_J}, s{SRD_J}, L_pc-{NAME}\ns_subb_u32 s{SRD_J+1}, s{SRD_J+1}, 0")
        e(f"s_mov_b32 s{SRD_J+2}, L_end-{NAME}\ns_mov_b32 s{SRD_J+3}, 0x20000")
        e(f"s_lshl_b32 s{T2}, s{T1}, 2\ns_add_u32 s{T2}, s{T2}, s{sW}\ns_mul_i32 s{T2}, s{T2}, 384")
        e(f"v_lshlrev_b32 v3, 7, v1\nv_mov_b32 v4, {OOB}\nv_cmp_gt_u32 vcc, 3, v1\nv_cndmask_b32 v3, v4, v3, vcc")
        vq.op(f"buffer_load_dword v{VCL}, v3, s[{SRD_J}:{SRD_J+3}], s{T2} offen", "pf")
    e(f"s_and_b32 s{sR}, s{sW}, 1\ns_lshr_b32 s{sC}, s{sW}, 1")
    e(f"s_lshr_b32 s{T2}, s{T0}, 1\ns_lshl_b32 s{T2}, s{T2}, 2\ns_and_b32 s{sRB}, s{T1}, 3\ns_add_u32 s{sRB}, s{sRB}, s{T2}")
    e(f"s_and_b32 s{T0}, s{T0}, 1\ns_lshr_b32 s{T2}, s{T1}, 3\ns_lshl_b32 s{sHG}, s{T0}, 2\ns_add_u32 s{sHG}, s{sHG}, s{T2}\ns_bfe_u32 s{sTY}, s{T1}, 0x10002")
    e(f"s_mul_i32 s{sHS}, s{T0}, 1536\ns_lshl_b32 s{T3}, s{T2}, 7\ns_lshl_b32 s{T3}, s{T3}, s{sTY}\ns_add_u32 s{sHS}, s{sHS}, s{T3}\ns_lshl_b32 s{T3}, s{sTY}, 9\ns_add_u32 s{sHS}, s{sHS}, s{T3}")
    e(f"s_mov_b32 s{sX}, 0\ns_mov_b32 s{sA}, 0\ns_mov_b32 s{sB}, 0\ns_mov_b32 s{sDL}, 0")
    e(f"s_lshl_b32 s{sXW}, s{sW}, 12\ns_mul_i32 s{sWW}, s{sW}, {BLK}\ns_add_u32 s{sWW}, s{sWW}, {XSZ}\ns_mov_b32 s{sHM}, 0\ns_mov_b32 s{sHM+1}, -1")
    e(f"s_lshl_b32 s{T0}, s{sRB}, 7\ns_lshl_b32 s{T1}, s{sW}, 5\ns_add_u32 s{T0}, s{T0}, s{T1}")
    e(f"v_lshrrev_b32 v2, 3, v1\nv_add_u32 v5, s{T0}, v2\nv_mul_u32_u24 v5, 1280, v5\nv_lshrrev_b32 v3, 4, v1\nv_and_b32 v4, 7, v1\nv_xor_b32 v6, v3, v4")
    e(f"v_lshl_add_u32 v{VX}, v6, 4, v5\nv_xor_b32 v6, 4, v6\nv_lshl_add_u32 v7, v6, 4, v5")
    e(f"v_add_u32 v{VX+1}, 9216, v7\nv_add_u32 v{VX+2}, {2*9216}, v{VX}\nv_add_u32 v{VX+3}, {3*9216}, v7")
    e(f"s_lshr_b32 s{T5}, s2, 3\ns_and_b32 s{T4}, s2, 1\ns_mul_i32 s{T0}, s{T5}, 52\ns_lshr_b32 s{T0}, s{T0}, 8\ns_add_u32 s{T0}, s{T0}, s{T4}\ns_mul_i32 s{T0}, s{T0}, 5")
    e(f"s_mul_i32 s{T4}, s{T4}, 12\ns_add_u32 s{T4}, s{T4}, 15\ns_cmp_lt_u32 s{T5}, 15\ns_cselect_b32 s{T0}, s{T0}, s{T4}\ns_add_u32 s{T0}, s{T0}, s{T5}\ns_bfe_u32 s{T1}, s2, 0x20001")
    e(f"s_cmp_lt_u32 s{T0}, 30\ns_movk_i32 s{T2}, 3072\ns_cselect_b32 s{T2}, 3840, s{T2}\ns_cselect_b32 s{T3}, 0, 30\ns_sub_u32 s{T3}, s{T0}, s{T3}")
    e(f"s_mul_i32 s{T4}, s{T1}, 160\ns_mul_i32 s{T5}, s{sW}, 40\ns_add_u32 s{T4}, s{T4}, s{T5}\ns_mul_i32 s{T4}, s{T4}, s{T2}\ns_lshl_b32 s{T3}, s{T3}, 7\ns_add_u32 s22, s{T4}, s{T3}\ns_lshl_b32 s23, s{T2}, 3")
    if cfg.rot:
        e(f"s_mul_i32 s{sK}, s{T1}, 5\ns_lshr_b32 s{sK}, s{sK}, 1\ns_lshl_b32 s{sX}, s{sK}, 7\ns_mul_i32 s{sA}, s{sK}, {64*3840}\ns_mul_i32 s{sB}, s{sK}, {64*3072}")
    e(f"v_lshlrev_b32 v3, 1, v3\nv_xor_b32 v4, v4, v3\nv_mul_u32_u24 v2, s{T2}, v2\nv_lshl_add_u32 v10, v4, 4, v2")
    e(f"s_lshl_b32 s{T3}, s{T0}, 8\ns_mul_i32 s{T1}, s{T1}, 13824\ns_add_u32 s{T3}, s{T3}, s{T1}\ns_add_u32 s{T3}, s{T3}, {CS_OFF}\ns_cmp_lt_u32 s2, 216\ns_cselect_b32 s{T3}, s{T3}, {OOB}")
    e(f"v_add_u32 v{VJ}, s{T3}, v{VL16}\nv_mov_b32 v9, {OOB}\ns_lshl_b32 s{T3}, s{sW}, 6\ns_add_u32 s{T3}, s{T3}, {CS_L}\nv_lshlrev_b32 v2, 2, v1\nv_add_u32 v2, s{T3}, v2")
    e(f"v_cmp_gt_u32 vcc, 16, v1\nv_mov_b32 v12, {CS_L+768}\ns_nop 0\nv_cndmask_b32 v12, v12, v2, vcc")
    e(f"v_lshrrev_b32 v2, 2, v1\nv_bfe_u32 v3, v1, 3, 2\nv_xor_b32 v3, s{sW}, v3\nv_lshlrev_b32 v3, 5, v3\nv_lshl_add_u32 v3, v2, 7, v3\nv_and_b32 v2, 3, v1\nv_lshl_add_u32 v3, v2, 3, v3\nv_add_u32 v13, {SCR_L}, v3")
    e(f"s_and_b32 s{T3}, s2, 7\ns_lshl_b32 s{T3}, s{T3}, 8\ns_and_b32 s{T4}, s2, 0xf8\ns_add_u32 s{T3}, s{T3}, s{T4}\ns_lshl_b32 s{T4}, s{sW}, 1\ns_add_u32 s{T3}, s{T3}, s{T4}\nv_lshrrev_b32 v2, 5, v1\nv_add_u32 v2, s{T3}, v2\nv_and_b32 v3, 31, v1")
    e(f"v_mul_u32_u24 v4, 1280, v2\nv_lshl_add_u32 v7, v3, 4, v4\nv_cmp_gt_u32 vcc, 16, v3\nv_and_b32 v2, 7, v2\nv_lshlrev_b32 v2, 4, v2\nv_cndmask_b32 v8, v9, v7, vcc")
    e(f"v_add_u32 v2, {CS_L+256}, v2\nv_cmp_eq_u32 vcc, 0, v3\nv_mov_b32 v11, {CS_L+784}\ns_lshl_b32 s{T3}, s{T3}, 4\nv_cndmask_b32 v11, v11, v2, vcc")
    e(f"s_add_u32 s{T3}, s{T3}, {RS_OFF-256}\nv_cmp_gt_u32 vcc, 16, v0\nv_add_u32 v2, s{T3}, v{VL16}\nv_mov_b32 v6, 0\nv_cndmask_b32 v2, v2, v{VJ}, vcc\nv_cmp_gt_u32 vcc, 24, v0\ns_nop 1\nv_cndmask_b32 v{VJ}, v9, v2, vcc")
    e(f"s_mul_i32 s{T4}, s{sW}, 5120\ns_add_u32 s{T4}, s{T4}, {SCR_L}\ns_mov_b32 s{T5}, {EP_OFF}")
    e("s_waitcnt lgkmcnt(0)")
    stamp(e, cfg, 1)
    srd(e, SRD_X, 4, S * D * 2)
    e(f"s_cmp_lt_u32 s{T0}, 30\ns_cselect_b32 s{SRD_J}, s6, s12\ns_cselect_b32 s{SRD_J+1}, s7, s13\ns_mov_b32 s{T1}, {D*F*2}\ns_cselect_b32 s{SRD_J+2}, {D*1920*2}, s{T1}")
    e(f"s_cmp_lt_u32 s2, 216\ns_cselect_b32 s{SRD_J+2}, s{SRD_J+2}, 0\ns_mov_b32 s{SRD_J+3}, 0x20000")
    X = f"s[{SRD_X}:{SRD_X+3}]"
    vq.op(f"buffer_load_dwordx4 v[16:19], v7, {X}, 0 offen", "job")
    vq.op(f"buffer_load_dwordx4 v[20:23], v7, {X}, 0 offen offset:512", "job")
    vq.op(f"buffer_load_dwordx4 v[24:27], v8, {X}, 0 offen offset:1024", "job")
    for i in range(5):
        e(f"s_add_u32 m0, s{T4}, {1024*i}")
        if i:
            e("s_add_u32 s22, s22, s23")
        vq.op(f"buffer_load_dwordx4 v10, s[{SRD_J}:{SRD_J+3}], s22 offen lds", "job")
    srd(e, SRD_WS, 20, WS_USED)
    vq.op(f"buffer_load_dword v{VEP}, v6, {WS}, s{T5} offen sc1", "job")
    srd(e, SRD_A, 6, D * 1920 * 2); srd(e, SRD_B, 12, D * F * 2); srd(e, SRD_O, 16, S * D * 2)
    e(f"s_cmp_eq_u32 s{sTY}, 1\ns_cbranch_scc1 L_ty1")
    save = (list(vq.q), vq.done)
    main_type(e, 0, cfg, vq)
    e("L_ty1:")
    vq.q, vq.done = list(save[0]), save[1]
    main_type(e, 1, cfg, vq)
    e("L_end:\ns_endpgm")
    return e.l


HEADER = open("parallel_sum__linear_attn_block__dense_activation_silu__prompt.s.ref").read().split("; Override")[0]


def build(cfg, verbose=False):
    out = [HEADER.rstrip(), f"; @launch grid=(256,1,1) block=(256,1,1) lds={LDS_SZ}",
           '.amdgcn_target "amdgcn-amd-amdhsa--gfx950"', ".text"]
    log = []
    body = pad_hazards(kernel(cfg), log)
    if not cfg.stamps and not cfg.drop:
        for x in sorted(set(check_waits(body, "k"))):
            print("CHECK", x, file=sys.stderr)
    if verbose:
        print("instructions:", len(body), "pads:", len(log), file=sys.stderr)
        for x in log:
            print("   pad", x, file=sys.stderr)
    out += [f".globl {NAME}", ".p2align 8", f".type {NAME},@function"]
    out += [x if x.endswith(":") else "    " + x for x in body]
    out.append('.section .rodata,"a"')
    out.append(f".p2align 6\n.amdhsa_kernel {NAME}\n  .amdhsa_next_free_vgpr 512\n  .amdhsa_next_free_sgpr 102\n"
               "  .amdhsa_accum_offset 256\n  .amdhsa_group_segment_fixed_size 0\n  .amdhsa_kernarg_size 72\n"
               "  .amdhsa_user_sgpr_count 2\n  .amdhsa_user_sgpr_kernarg_segment_ptr 1\n  .amdhsa_system_sgpr_workgroup_id_x 1\n"
               "  .amdhsa_float_denorm_mode_32 3\n.end_amdhsa_kernel")
    return "\n".join(out) + "\n"


if __name__ == "__main__":
    cfg = Cfg()
    for kv in sys.argv[2:]:
        if kv == "-v":
            continue
        k, v = kv.split("=", 1)
        assert hasattr(cfg, k), k
        setattr(cfg, k, v if k.endswith("flags") or k in ("drop", "points") else int(v))
    txt = build(cfg, "-v" in sys.argv)
    open(sys.argv[1], "w").write(txt)
```
